```python
import torch

def _softmax(x, axis=-1):
    return torch.softmax(x, dim=axis)
def _gelu(x):
    return torch.nn.functional.gelu(x, approximate="tanh")
def _silu(x):
    return torch.nn.functional.silu(x)
def _sigmoid(x):
    return torch.sigmoid(x)
def _layernorm(x, axis=-1, eps=1e-5):
    m = x.mean(dim=axis, keepdim=True)
    v = x.var(dim=axis, keepdim=True, unbiased=False)
    return (x - m) / torch.sqrt(v + eps)
def _scatter_add(tgt, idx, src, axis=0):
    return tgt.clone().index_add_(axis, idx, src)
def _segment_sum(src, seg, n):
    out = torch.zeros((n,) + src.shape[1:], dtype=src.dtype)
    return out.index_add_(0, seg, src)
def _pad(x, pw):
    flat = tuple(v for pair in reversed(pw) for v in pair)
    return torch.nn.functional.pad(x, flat)

kernel_name = 'sequential_preLN__spectral_gfnet__glu_gated_bilinear__prompt'

def setup_inputs():

    _w = (lambda a: (lambda t: t.to(torch.bfloat16) if t.is_floating_point() else t)(torch.as_tensor(a)))
    def _A_setup():
        B, S, D = 1, 2048, 1024
        Df = D // 2 + 1
        return {
            "x": _w((lambda *s: torch.randn(*s, dtype=torch.bfloat16) * 0.05)(B, S, D)),
            "w_r": _w((lambda *s: torch.randn(*s, dtype=torch.bfloat16) * 0.4)(S, Df) * 0.02),
            "w_i": _w((lambda *s: torch.randn(*s, dtype=torch.bfloat16) * 0.4)(S, Df) * 0.02),
        }
    _A_in = _A_setup()

    def _B_setup():
        B, S, D, F = 1, 2048, 1024, 3584
        return {
            "x": _w((lambda *s: torch.randn(*s, dtype=torch.bfloat16) * 0.05)(B, S, D)),
            "w_gate": _w((lambda *s: torch.randn(*s, dtype=torch.bfloat16) * 0.2)(D, F) * (D ** -0.5)),
            "w_up": _w((lambda *s: torch.randn(*s, dtype=torch.bfloat16) * 0.2)(D, F) * (D ** -0.5)),
            "w_down": _w((lambda *s: torch.randn(*s, dtype=torch.bfloat16) * 0.2)(F, D) * (F ** -0.5)),
        }
    _B_in = _B_setup()

    return {
        "A_x": _A_in["x"],
        "A_w_r": _A_in["w_r"],
        "A_w_i": _A_in["w_i"],
        "B_x": _B_in["x"],
        "B_w_gate": _B_in["w_gate"],
        "B_w_up": _B_in["w_up"],
        "B_w_down": _B_in["w_down"],
    }

def reference(A_x, A_w_r, A_w_i, B_x, B_w_gate, B_w_up, B_w_down):
    def _A_ref(x, w_r, w_i):
        B, S, D = x.shape
        X = (lambda x, axes=(-2,-1): torch.fft.rfft2(x.float(), dim=axes))(x, axes=(-2, -1))
        W = w_r + 1j * w_i
        X = X * W
        y = (lambda x, s, axes=(-2,-1): torch.fft.irfft2(x, s=s, dim=axes).to(torch.bfloat16))(X, (S, D), axes=(-2, -1))
        return y

    def _B_ref(x, w_gate, w_up, w_down):
        g = torch.einsum("bsd,df->bsf", x, w_gate)
        u = torch.einsum("bsd,df->bsf", x, w_up)
        h = g * u
        return torch.einsum("bsf,fd->bsd", h, w_down)

    x = A_x
    h = x + _A_ref(_layernorm(x, axis=-1), A_w_r, A_w_i)
    h2 = h + _B_ref(_layernorm(h, axis=-1), B_w_gate, B_w_up, B_w_down)
    return h2
```

```python
WS_ZW   = 0
WS_ZP   = 9 << 20
WS_LN2  = 14 << 20
WS_H    = 18 << 20
WS_HH   = 22 << 20
WS_DIAG = 64 << 20

class Asm:
    def __init__(self):
        self.l = []
    def __call__(self, s):
        for x in s.split("\n"):
            x = x.rstrip()
            if x.strip():
                self.l.append(x if x.endswith(":") or x.startswith(".") else "  " + x.strip())
    def text(self):
        return "\n".join(self.l) + "\n"

def kernel_head(a, name):
    a(f".globl {name}\n.p2align 8\n.type {name},@function\n{name}:")

def kernel_desc(name, vgpr, acc, sgpr=96):
    return f""".amdhsa_kernel {name}
  .amdhsa_next_free_vgpr {vgpr}
  .amdhsa_next_free_sgpr {sgpr}
  .amdhsa_accum_offset {acc}
  .amdhsa_group_segment_fixed_size 0
  .amdhsa_kernarg_size 80
  .amdhsa_user_sgpr_count 2
  .amdhsa_user_sgpr_kernarg_segment_ptr 1
  .amdhsa_system_sgpr_workgroup_id_x 1
  .amdhsa_float_denorm_mode_32 3
.end_amdhsa_kernel
"""

def srd(a, d, base_lo, base_hi, nbytes):
    if base_lo != f"s{d}":
        a(f"s_mov_b32 s{d}, {base_lo}")
    a(f"s_and_b32 s{d+1}, {base_hi}, 0xffff")
    a(f"s_mov_b32 s{d+2}, {nbytes}")
    a(f"s_mov_b32 s{d+3}, 0x20000")

DS = 76
def diag_begin(a, diag):
    diag_mark(a, diag, 0)

def diag_mark(a, diag, k):
    if diag:
        a(f"s_memrealtime s[{DS+4*k}:{DS+4*k+1}]")
        a(f"s_memtime s[{DS+4*k+2}:{DS+4*k+3}]")

def diag_end(a, diag, slot, ws_lo, ws_hi, vt=2):
    if not diag:
        return
    a(f"s_waitcnt vmcnt(0) lgkmcnt(0)")
    diag_mark(a, diag, 3)
    a(f"s_lshl_b32 s{DS+16}, s2, 6")
    a(f"s_add_u32 s{DS+16}, s{DS+16}, {WS_DIAG + slot*32768}")
    a(f"s_waitcnt lgkmcnt(0)")
    for j in range(16):
        a(f"v_mov_b32 v{vt+j}, s{DS+j}")
    a(f"v_mov_b32 v{vt+16}, s{DS+16}")
    a(f"s_mov_b64 exec, 1")
    for k in range(4):
        a(f"global_store_dwordx4 v{vt+16}, v[{vt+4*k}:{vt+4*k+3}], s[{ws_lo}:{ws_hi}] offset:{16*k}")

class VM:
    def __init__(self):
        self.seq = []
    def issue(self, tag):
        self.seq.append(tag)
    def need(self, tags):
        if isinstance(tags, (str, tuple)):
            tags = [tags]
        last = max(i for i, t in enumerate(self.seq) if t in tags)
        return len(self.seq) - 1 - last

def ablate(text, abl):
    out = []
    inloop = False
    for l in text.split("\n"):
        if l.endswith("_loop:"): inloop = True
        if "s_cbranch_scc1" in l and "_loop" in l: inloop = False
        drop = False
        if inloop:
            if "mfma" in abl and "v_mfma" in l: drop = True
            if "dma" in abl and l.rstrip().endswith(" lds"): drop = True
            if "act" in abl and "buffer_load_dwordx4 a[" in l: drop = True
            if "ds" in abl and "ds_read" in l: drop = True
            if "bar" in abl and "s_barrier" in l: drop = True
            if "adv" in abl and ("s_add_u32 s28, s28" in l or "s_add_u32 s29, s29" in l): drop = True
        if "store" in abl and "buffer_store" in l: drop = True
        if not drop: out.append(l)
    return "\n".join(out)
```

```python
from asmlib import *
from fftlib import *
NAME = "fft1_kernel"
LDS = 16384
X0, X1, FA, FB, ST = 4, 12, 20, 36, 52
BRE, BIM, TC, TS, C2, S2, N2 = 64, 80, 96, 112, 128, 136, 144
TMP, DRE, DIM, Z, WL, WO = 152, 160, 176, 192, 208, 224

def gen(diag=False, sf=""):
    a = Asm()
    kernel_head(a, NAME)
    diag_begin(a, diag)
    a(f"""s_cmp_ge_u32 s2, 256
    s_cbranch_scc1 L_f1_end
    s_load_dwordx4 s[4:7], s[0:1], 0
    s_load_dwordx2 s[8:9], s[0:1], 16
    s_load_dwordx2 s[10:11], s[0:1], 72
    v_lshrrev_b32 v2, 6, v0
    v_mov_b32 v1, v0
    v_and_b32 v0, 63, v0
    v_readfirstlane_b32 s13, v2
    s_lshr_b32 s14, s2, 5
    s_and_b32 s15, s2, 31
    s_lshl_b32 s16, s14, 7
    s_add_u32 s16, s16, s15
    s_lshl_b32 s17, s13, 5
    s_add_u32 s16, s16, s17
    s_lshl_b32 s16, s16, 11
    s_add_u32 s17, s16, {1024*2048}
    v_lshlrev_b32 v2, 4, v0
    v_lshlrev_b32 v3, 2, v1
    s_lshl_b32 s18, s14, 7
    s_add_u32 s18, s18, s15
    s_mul_i32 s40, s18, 2052
    s_add_u32 s41, s40, 65664
    s_add_u32 s42, s41, 65664
    s_add_u32 s43, s42, 65664
    s_waitcnt lgkmcnt(0)""")
    srd(a, 20, "s4", "s5", 4194304)
    for b, s in ((X0, 16), (X1, 17)):
        a(f"buffer_load_dwordx4 {R(b,4)}, v2, s[20:23], s{s} offen")
        a(f"buffer_load_dwordx4 {R(b+4,4)}, v2, s[20:23], s{s} offen offset:1024")
    srd(a, 24, "s6", "s7", 2101248)
    srd(a, 28, "s8", "s9", 2101248)
    for arr in range(2):
        for e in range(2):
            for r in range(4):
                a(f"buffer_load_dword v{WL+arr*8+e*4+r}, v3, s[{24+4*arr}:{27+4*arr}], s{40+r} offen offset:{1026*e}")
    a(f"""v_and_b32 v243, 3, v1
    v_mul_u32_u24 v243, 65664, v243
    v_bfe_u32 v244, v1, 2, 1
    v_mul_u32_u24 v244, 1026, v244
    v_add3_u32 v243, v243, v244, s40
    v_add_u32 v243, 1024, v243
    v_cmp_gt_u32 vcc, 8, v1
    v_mov_b32 v244, 0x7fff0000
    v_cndmask_b32 v243, v244, v243, vcc
    buffer_load_ushort v245, v243, s[24:27], 0 offen
    buffer_load_ushort v246, v243, s[28:31], 0 offen""")
    a(f"s_add_u32 s32, s10, {WS_ZW}\ns_addc_u32 s33, s11, 0")
    srd(a, 32, "s32", "s33", 257 * 32768)
    a(f"""v_and_b32 v56, 31, v0
    v_cvt_f32_u32 v56, v56
    v_lshrrev_b32 v57, 5, v0
    v_cvt_f32_u32 v57, v57
    v_mul_f32 v57, 4.0, v57
    v_mul_f32 v58, {fl(1/32)}, v56
    v_mul_f32 v59, v57, v58""")
    def e1(i, c, s):
        a(f"v_cvt_pk_f16_f32 v{BRE+i}, v{c}, v{s}")
        a(f"v_cvt_pk_f16_f32 v{BIM+i}, -v{s}, v{c}")
    angles(a, 58, 59, [8 * t + r for t in range(4) for r in (0, 2, 1, 3)], TMP, e1)
    planar_consts(a, 58, 59, TMP, [("v_cvt_pk_f16_f32", C2, S2, N2)])
    a(f"v_mul_f32 v58, {fl(1/1024)}, v56\nv_mul_f32 v59, v57, v58")
    angles_f32(a, 58, 59, ROWM, TC, TS, TMP)
    a(f"""s_lshl_b32 s18, s13, 12
    v_lshlrev_b32 v240, 5, v0
    v_add_u32 v240, s18, v240
    v_and_b32 v241, 31, v0
    v_lshlrev_b32 v241, 2, v241
    v_lshrrev_b32 v242, 5, v0
    v_lshl_add_u32 v241, v242, 9, v241
    v_add_u32 v241, s18, v241
    v_add_u32 v242, 128, v241""")
    a("s_waitcnt vmcnt(18)")
    diag_mark(a, diag, 1)
    for src, dst in ((X0, FA), (X1, FB)):
        for i in range(8):
            a(f"v_lshlrev_b32 v{dst+2*i}, 16, v{src+i}")
            a(f"v_and_b32 v{dst+2*i+1}, 0xffff0000, v{src+i}")
    layernorm2(a, [FA, FB], ST, 1 / 512)
    ra, rb = ST + 8, ST + 9
    a(f"v_mov_b32 v{ST}, v{rb}")
    for i in range(8):
        t = TMP + 4 * (i & 1)
        a(f"v_pk_mul_f32 {R(FB+2*i,2)}, {R(FB+2*i,2)}, {R(ST,2)} op_sel_hi:[1,0]")
        a(f"v_pk_fma_f32 {R(t,2)}, {R(FA+2*i,2)}, {R(ra,2)}, {R(FB+2*i,2)} op_sel_hi:[1,0,1]")
        a(f"v_pk_fma_f32 {R(t+2,2)}, {R(FA+2*i,2)}, {R(ra,2)}, {R(FB+2*i,2)} op_sel_hi:[1,0,1] neg_lo:[0,0,1] neg_hi:[0,0,1]")
        a(f"v_cvt_pk_f16_f32 v{Z+2*i}, v{t}, v{t+2}")
        a(f"v_cvt_pk_f16_f32 v{Z+2*i+1}, v{t+1}, v{t+3}")
        if i & 1:
            q = i >> 1
            a(f"ds_write_b128 v240, {R(Z+4*q,4)} offset:{(q&1)*16 + (q>>1)*2048}")
    a("s_waitcnt lgkmcnt(0)")
    for t in range(4):
        a(f"ds_read2st64_b32 {R(Z+4*t,2)}, v241 offset0:{4*t} offset1:{4*t+1}")
        a(f"ds_read2st64_b32 {R(Z+4*t+2,2)}, v242 offset0:{4*t} offset1:{4*t+1}")
    a("""s_lshr_b32 s18, s2, 1
    s_and_b32 s18, s18, 7
    s_lshl_b32 s19, s2, 7
    s_mov_b32 s36, 0x05040100
    s_mov_b32 s37, 0x07060302
    v_lshlrev_b32 v3, 15, v1
    s_waitcnt vmcnt(0)""")
    for job in range(2):
        for e in range(2):
            o = WO + 4 * (2 * job + e)
            for r in range(4):
                a(f"v_perm_b32 v{o+r}, v{WL+8+e*4+r}, v{WL+e*4+r}, s{36+job}")
            a(f"s_xor_b32 s38, s18, {4+2*job+e}\ns_lshl_b32 s38, s38, 4\ns_add_u32 s38, s38, s19")
            a(f"buffer_store_dwordx4 {R(o,4)}, v3, s[32:35], s38 offen {sf}")
    a(f"""v_lshl_or_b32 v245, v246, 16, v245
    v_bfe_u32 v243, v1, 2, 1
    v_xor_b32 v243, s18, v243
    v_lshlrev_b32 v243, 4, v243
    v_and_b32 v246, 3, v1
    v_lshl_add_u32 v243, v246, 2, v243
    v_add_u32 v243, {256*32768}, v243
    v_cndmask_b32 v243, v244, v243, vcc
    v_xor_b32 v244, 64, v243
    buffer_store_dword v245, v244, s[32:35], s19 offen {sf}""")
    for t in range(4):
        a(f"s_waitcnt lgkmcnt({6-2*t})")
        a(f"v_mfma_f32_32x32x16_f16 {R(DRE,16)}, {R(Z+4*t,4)}, {R(BRE+4*t,4)}, {'0' if t==0 else R(DRE,16)}")
        a(f"v_mfma_f32_32x32x16_f16 {R(DIM,16)}, {R(Z+4*t,4)}, {R(BIM+4*t,4)}, {'0' if t==0 else R(DIM,16)}")
    cmul_planar(a, DRE, DIM, TC, TS, True, "v_cvt_pk_f16_f32", Z, Z + 8, TMP)
    dft_planar(a, "f16", DRE, DIM, Z, Z + 8, C2, S2, N2, False)
    a(f"""v_lshlrev_b32 v4, 2, v1
    v_sub_u32 v5, 1024, v1
    v_and_b32 v5, 1023, v5
    v_lshlrev_b32 v5, 2, v5
    v_sub_u32 v6, 3072, v4
    v_and_b32 v7, 1, v1
    v_lshlrev_b32 v7, 1, v7
    v_xor_b32 v7, s18, v7
    v_lshlrev_b32 v7, 4, v7
    v_lshrrev_b32 v8, 1, v1
    v_lshl_add_u32 v7, v8, 15, v7
    v_xor_b32 v8, 16, v7
    s_add_u32 s38, s19, {128*32768}
    v_lshlrev_b32 v9, 12, v246""")
    for i in range(16):
        a(f"v_cvt_pk_f16_f32 v{Z+i}, v{DRE+i}, v{DIM+i}")
    for jj in range(4):
        a(f"ds_write2st64_b32 v241, v{Z+4*jj}, v{Z+4*jj+2} offset0:{4*jj} offset1:{4*jj+1}")
        a(f"ds_write2st64_b32 v242, v{Z+4*jj+1}, v{Z+4*jj+3} offset0:{4*jj} offset1:{4*jj+1}")
    a("s_waitcnt lgkmcnt(0)\ns_barrier")
    diag_mark(a, diag, 2)
    if diag: a("s_waitcnt lgkmcnt(0)")
    for it in range(2):
        p, m = 20 + 8 * it, 24 + 8 * it
        a(f"ds_read2st64_b32 {R(p,2)}, v4 offset0:{4*it} offset1:{16+4*it}")
        a(f"ds_read2st64_b32 {R(p+2,2)}, v4 offset0:{32+4*it} offset1:{48+4*it}")
        a(f"ds_read2st64_b32 {R(m,2)}, v{5+it} offset0:0 offset1:16")
        a(f"ds_read2st64_b32 {R(m+2,2)}, v{5+it} offset0:32 offset1:48")
    a("ds_read_b32 v36, v9 offset:2048")
    for it in range(2):
        p, m, u, v = 20 + 8 * it, 24 + 8 * it, 40 + 8 * it, 44 + 8 * it
        a(f"s_waitcnt lgkmcnt({5-4*it})")
        for i in range(4):
            a(f"v_pk_add_f16 v{u+i}, v{p+i}, v{m+i} neg_hi:[0,1]")
            a(f"v_pk_add_f16 v{v+i}, v{p+i}, v{m+i} op_sel:[1,1] op_sel_hi:[0,0] neg_hi:[1,0]")
        so = "s19" if it == 0 else "s38"
        a(f"buffer_store_dwordx4 {R(u,4)}, v7, s[32:35], {so} offen {sf}")
        a(f"buffer_store_dwordx4 {R(v,4)}, v8, s[32:35], {so} offen {sf}")
    a(f"""s_waitcnt lgkmcnt(0)
    v_pk_add_f16 v37, v36, v36 neg_hi:[0,1]
    v_pk_add_f16 v38, v36, v36 op_sel:[1,1] op_sel_hi:[0,0] neg_hi:[1,0]
    v_and_b32 v39, 4, v1
    v_cmp_eq_u32 vcc, 0, v39
    v_cndmask_b32 v37, v38, v37, vcc
    buffer_store_dword v37, v243, s[32:35], s19 offen {sf}""")
    diag_end(a, diag, 0, 10, 11)
    a("L_f1_end:\ns_endpgm")
    return a.text(), kernel_desc(NAME, 248, 248), f"kernel={NAME} grid=(256,1,1) block=(256,1,1) lds={LDS}"
```

```python
from asmlib import *
from fftlib import *
NAME = "fft2_kernel"
LDS = 32768
T, WU, BRE, BIM = 8, 24, 40, 56
TC1, TS1, TC2, TS2 = 72, 88, 104, 120
CH, SH, NH, CB, SB, NB, C4, S4, N4 = 136, 144, 152, 160, 168, 176, 184, 192, 200
TMP, DRE, DIM = 208, 216, 232

def gen(diag=False, sf=""):
    a = Asm()
    kernel_head(a, NAME)
    diag_begin(a, diag)
    a(f"""s_cmp_ge_u32 s2, 257
    s_cbranch_scc1 L_f2_end
    s_load_dwordx2 s[10:11], s[0:1], 72
    v_lshrrev_b32 v2, 6, v0
    v_and_b32 v0, 63, v0
    v_lshlrev_b32 v1, 4, v0
    v_readfirstlane_b32 s13, v2
    s_lshl_b32 s14, s2, 15
    s_lshl_b32 s15, s13, 13
    s_add_u32 s14, s14, s15
    s_add_u32 s16, s14, 4096
    s_mov_b32 m0, s15
    s_waitcnt lgkmcnt(0)
    s_add_u32 s20, s10, {WS_ZW}
    s_addc_u32 s21, s11, 0""")
    srd(a, 20, "s20", "s21", 257 * 32768)
    for i in range(8):
        if i == 4: a("s_add_u32 m0, s15, 4096")
        a(f"buffer_load_dwordx4 v1, s[20:23], s{14 if i < 4 else 16} offen offset:{1024*(i&3)} lds")
    a(f"s_add_u32 s24, s10, {WS_ZP}\ns_addc_u32 s25, s11, 0")
    srd(a, 24, "s24", "s25", 257 * 16384)
    a(f"""s_and_b32 s17, s13, 1
    v_and_b32 v6, 31, v0
    v_cvt_f32_u32 v2, v6
    v_lshrrev_b32 v7, 5, v0
    v_lshlrev_b32 v3, 2, v7
    v_cvt_f32_u32 v3, v3
    v_lshl_add_u32 v4, v6, 1, s17
    v_cvt_f32_u32 v4, v4
    v_lshl_add_u32 v5, v7, 3, s17
    v_cvt_f32_u32 v5, v5""")
    SP, BS = 6, 7
    a(f"v_mul_f32 v{SP}, {fl(1/64)}, v4\nv_mul_f32 v{BS}, v3, v{SP}")
    def e1(i, c, s):
        a(f"v_cvt_pk_f16_f32 v{BRE+i}, v{c}, v{s}")
        a(f"v_cvt_pk_f16_f32 v{BIM+i}, -v{s}, v{c}")
    angles(a, SP, BS, ROWM, TMP, e1)
    a(f"v_mul_f32 v{SP}, {fl(1/2048)}, v4\nv_mul_f32 v{BS}, v3, v{SP}")
    angles_f32(a, SP, BS, ROWM, TC1, TS1, TMP)
    a(f"v_mul_f32 v{SP}, {fl(1/32)}, v2\nv_mul_f32 v{BS}, v3, v{SP}")
    planar_consts(a, SP, BS, TMP, [("v_cvt_pk_f16_f32", CH, SH, NH), ("v_cvt_pk_bf16_f32", CB, SB, NB)])
    a(f"v_mul_f32 v{BS}, v5, v{SP}\nv_mul_f32 v{BS}, 0.5, v{BS}")
    planar_consts(a, SP, BS, TMP, [("v_cvt_pk_bf16_f32", C4, S4, N4)])
    a(f"v_mul_f32 v{SP}, {fl(1/1024)}, v2\nv_mul_f32 v{BS}, v5, v{SP}\nv_mul_f32 v{BS}, 0.5, v{BS}")
    angles_f32(a, SP, BS, ROWM, TC2, TS2, TMP)
    a(f"""v_bfe_u32 v2, v0, 1, 3
    v_xor_b32 v2, s13, v2
    v_lshlrev_b32 v2, 4, v2
    v_lshl_add_u32 v2, v0, 7, v2
    v_xor_b32 v3, 64, v2
    v_and_b32 v4, 31, v0
    v_lshlrev_b32 v4, 9, v4
    v_lshrrev_b32 v5, 5, v0
    v_lshl_add_u32 v4, v5, 6, v4
    s_lshl_b32 s18, s13, 4
    s_lshl_b32 s19, s2, 14
    s_add_u32 s18, s18, s19
    s_waitcnt vmcnt(0)
    s_barrier""")
    diag_mark(a, diag, 1)
    if diag: a("s_waitcnt lgkmcnt(0)")
    a("""s_lshl_b32 s19, s2, 2
    s_add_u32 s19, s19, s13
    s_cmp_ge_u32 s19, 1026
    s_cbranch_scc1 L_f2_end""")
    for t in range(4): a(f"ds_read_b128 {R(T+4*t,4)}, v2 offset:{8192*t}")
    for t in range(4): a(f"ds_read_b128 {R(WU+4*t,4)}, v3 offset:{8192*t}")
    for t in range(4):
        a(f"s_waitcnt lgkmcnt({7-t})")
        a(f"v_mfma_f32_32x32x16_f16 {R(DRE,16)}, {R(T+4*t,4)}, {R(BRE+4*t,4)}, {'0' if t==0 else R(DRE,16)}")
        a(f"v_mfma_f32_32x32x16_f16 {R(DIM,16)}, {R(T+4*t,4)}, {R(BIM+4*t,4)}, {'0' if t==0 else R(DIM,16)}")
    a("s_waitcnt lgkmcnt(0)")
    cmul_planar(a, DRE, DIM, TC1, TS1, True, "v_cvt_pk_f16_f32", T, T + 8, TMP)
    dft_planar(a, "f16", DRE, DIM, T, T + 8, CH, SH, NH, False)
    for i in range(16):
        a(f"v_lshlrev_b32 v{BRE+i}, 16, v{WU+i}")
        a(f"v_and_b32 v{BIM+i}, 0xffff0000, v{WU+i}")
    cmul_planar(a, DRE, DIM, BRE, BIM, False, "v_cvt_pk_bf16_f32", T, T + 8, TMP)
    dft_planar(a, "bf16", DRE, DIM, T, T + 8, CB, NB, SB, True)
    cmul_planar(a, DRE, DIM, TC2, TS2, False, "v_cvt_pk_bf16_f32", T, T + 8, TMP)
    dft_planar(a, "bf16", DRE, DIM, T, T + 8, C4, N4, S4, True)
    a("""s_and_b32 s19, s19, 0x3fe
    s_cmp_eq_u32 s19, 0
    s_cselect_b32 s17, 0xffff, -1""")
    diag_mark(a, diag, 2)
    for jj in range(4):
        for r in range(4):
            a(f"v_cvt_pk_bf16_f32 v{T+4*jj+r}, v{DRE+4*jj+r}, v{DIM+4*jj+r}")
            a(f"v_and_b32 v{T+4*jj+r}, s17, v{T+4*jj+r}")
        a(f"buffer_store_dwordx4 {R(T+4*jj,4)}, v4, s[24:27], s18 offen offset:{128*jj} {sf}")
    diag_end(a, diag, 1, 10, 11)
    a("L_f2_end:\ns_endpgm")
    return a.text(), kernel_desc(NAME, 248, 248), f"kernel={NAME} grid=(257,1,1) block=(256,1,1) lds={LDS}"
```

```python
from asmlib import *
from fftlib import *
NAME = "fft3_kernel"
IMG = 4352
LDS = 4 * IMG
U, XR, BRE, BIM = 8, 40, 56, 88
TC, TS, C4, S4, N4 = 120, 136, 152, 160, 168
TMP, DRE, DIM, ST, HP = 176, 184, 200, 216, 228

def gen(diag=False, sf=""):
    a = Asm()
    kernel_head(a, NAME)
    diag_begin(a, diag)
    a(f"""s_cmp_ge_u32 s2, 256
    s_cbranch_scc1 L_f3_end
    s_load_dwordx2 s[4:5], s[0:1], 0
    s_load_dwordx2 s[10:11], s[0:1], 72
    v_lshrrev_b32 v2, 6, v0
    v_mov_b32 v1, v0
    v_and_b32 v0, 63, v0
    v_readfirstlane_b32 s13, v2
    s_and_b32 s12, s2, 7
    s_lshl_b32 s12, s12, 5
    s_lshr_b32 s14, s2, 3
    s_add_u32 s12, s12, s14
    v_lshrrev_b32 v2, 2, v0
    v_lshlrev_b32 v2, 14, v2
    v_and_b32 v3, 3, v0
    v_lshl_add_u32 v2, v3, 4, v2
    v_cmp_gt_u32 vcc, 2, v1
    v_mov_b32 v4, 0x7fff0000
    v_lshlrev_b32 v3, 4, v1
    v_add_u32 v3, {256*16384}, v3
    v_cndmask_b32 v3, v4, v3, vcc
    s_lshl_b32 s14, s12, 6
    s_lshl_b32 s15, s13, 20
    s_add_u32 s15, s15, s14
    v_and_b32 v4, 31, v0
    v_lshlrev_b32 v4, 6, v4
    v_lshrrev_b32 v5, 5, v0
    v_lshl_add_u32 v4, v5, 4, v4
    s_lshl_b32 s16, s12, 2
    s_add_u32 s16, s16, s13
    s_lshl_b32 s16, s16, 11
    s_add_u32 s17, s16, {1024*2048}
    s_waitcnt lgkmcnt(0)
    s_add_u32 s20, s10, {WS_ZP}
    s_addc_u32 s21, s11, 0""")
    srd(a, 20, "s20", "s21", 257 * 16384)
    for n in range(4):
        a(f"buffer_load_dwordx4 {R(U+4*n,4)}, v2, s[20:23], s15 offen")
        if n < 3: a(f"s_add_u32 s15, s15, {16*16384}")
    a(f"buffer_load_dwordx4 {R(U+16,4)}, v3, s[20:23], s14 offen")
    srd(a, 24, "s4", "s5", 4194304)
    for z in range(2):
        for x in range(2):
            a(f"buffer_load_dwordx4 {R(XR+8*z+4*x,4)}, v4, s[24:27], s{16+z} offen offset:{32*x}")
    a(f"s_add_u32 s28, s10, {WS_H}\ns_addc_u32 s29, s11, 0")
    srd(a, 28, "s28", "s29", 4194304)
    a(f"s_add_u32 s32, s10, {WS_LN2}\ns_addc_u32 s33, s11, 0")
    srd(a, 32, "s32", "s33", 4194304)
    a(f"""v_bfe_u32 v5, v0, 2, 2
    v_lshlrev_b32 v5, 3, v5
    v_bfe_u32 v6, v0, 4, 1
    v_lshl_add_u32 v5, v6, 2, v5
    v_and_b32 v6, 3, v0
    v_add_u32 v5, v5, v6
    v_cvt_f32_u32 v5, v5
    v_lshrrev_b32 v6, 5, v0
    v_cvt_f32_u32 v6, v6
    v_mul_f32 v6, 4.0, v6
    v_mul_f32 v{ST}, {fl(1/32)}, v5
    v_mul_f32 v{ST+1}, v6, v{ST}
    v_mul_f32 v{ST+1}, 0.5, v{ST+1}""")
    cv = "v_cvt_pk_bf16_f32"
    def e3(i, c, s):
        o, p = BRE + 2 * i, BIM + 2 * i
        if i < 8:
            a(f"{cv} v{o}, v{c}, -v{s}\n{cv} v{o+1}, -v{s}, -v{c}\n{cv} v{p}, v{s}, v{c}\n{cv} v{p+1}, v{c}, -v{s}")
        else:
            a(f"{cv} v{o}, v{c}, v{s}\n{cv} v{o+1}, -v{s}, v{c}\n{cv} v{p}, v{s}, -v{c}\n{cv} v{p+1}, v{c}, v{s}")
    angles(a, ST, ST + 1, [4 * t + x for t in range(8) for x in range(2)], TMP, e3)
    a(f"v_mul_f32 v{ST}, {fl(1/1024)}, v5\nv_mul_f32 v{ST+1}, v6, v{ST}")
    angles_f32(a, ST, ST + 1, ROWM, TC, TS, TMP)
    a(f"""v_and_b32 v5, 31, v0
    v_cvt_f32_u32 v5, v5
    v_mul_f32 v{ST}, {fl(1/32)}, v5
    v_mul_f32 v{ST+1}, v6, v{ST}""")
    planar_consts(a, ST, ST + 1, TMP, [(cv, C4, S4, N4)])
    a(f"""s_lshl_b32 s14, s13, 10
    v_lshl_add_u32 v5, v0, 2, s14
    v_lshlrev_b32 v6, 2, v1
    v_add_u32 v6, 4096, v6
    v_min_u32 v6, {4096+8}, v6
    s_mul_i32 s14, s13, {IMG}
    v_and_b32 v2, 31, v0
    v_lshrrev_b32 v3, 5, v0
    v_lshl_add_u32 v7, v3, 6, v2
    v_lshl_add_u32 v2, v7, 3, s14
    v_sub_u32 v3, 96, v7
    v_lshl_add_u32 v3, v3, 3, s14
    v_and_b32 v7, 31, v0
    v_lshlrev_b32 v7, 10, v7
    v_lshrrev_b32 v{ST}, 5, v0
    v_lshl_add_u32 v7, v{ST}, 9, v7
    s_lshr_b32 s18, s12, 1
    s_lshl_b32 s18, s18, 15
    s_and_b32 s19, s12, 1
    s_lshl_b32 s19, s19, 7
    s_add_u32 s18, s18, s19
    s_lshl_b32 s19, s13, 4
    s_add_u32 s18, s18, s19""")
    for n in range(5):
        a(f"s_waitcnt vmcnt({8-n})")
        if n == 0: diag_mark(a, diag, 1)
        for r in range(4):
            if n < 4: a(f"ds_write_b32 v5, v{U+4*n+r} offset:{IMG*r + 256*n}")
            else: a(f"ds_write_b32 v6, v{U+16+r} offset:{IMG*r}")
    a("s_waitcnt lgkmcnt(0)\ns_barrier")
    for t in range(8):
        for x in range(2):
            if t < 4: a(f"ds_read_b64 {R(U+4*t+2*x,2)}, v2 offset:{(128*t+32*x)*8}")
            else: a(f"ds_read_b64 {R(U+4*t+2*x,2)}, v3 offset:{(416-128*(t-4)-32*x)*8}")
    for t in range(8):
        a(f"s_waitcnt lgkmcnt({14-2*t})")
        a(f"v_mfma_f32_32x32x16_bf16 {R(DRE,16)}, {R(U+4*t,4)}, {R(BRE+4*t,4)}, {'0' if t==0 else R(DRE,16)}")
        a(f"v_mfma_f32_32x32x16_bf16 {R(DIM,16)}, {R(U+4*t,4)}, {R(BIM+4*t,4)}, {'0' if t==0 else R(DIM,16)}")
    cmul_planar(a, DRE, DIM, TC, TS, False, cv, U, U + 8, TMP)
    dft_planar(a, "bf16", DRE, DIM, U, U + 8, C4, N4, S4, True)
    FX = BRE
    a("s_waitcnt vmcnt(0)")
    for z in range(2):
        for x in range(2):
            for d in range(4):
                s, r = d >> 1, 2 * (d & 1)
                o = FX + 16 * z + 4 * (2 * s + x) + r
                a(f"v_lshlrev_b32 v{o}, 16, v{XR+8*z+4*x+d}")
                a(f"v_and_b32 v{o+1}, 0xffff0000, v{XR+8*z+4*x+d}")
    a(f"s_mov_b32 s36, {fl(2.0**-13)}")
    for z in range(2):
        for x in range(2):
            for d in range(4):
                s, r = d >> 1, 2 * (d & 1)
                k = 4 * (2 * s + x) + r
                o = FX + 16 * z + k
                t = TMP + 2 * (d & 1)
                neg = " neg_lo:[0,1] neg_hi:[0,1]" if z else ""
                a(f"v_pk_add_f32 {R(t,2)}, {R(DRE+k,2)}, {R(DIM+k,2)}{neg}")
                a(f"{cv} v{t+1}, v{t}, v{t+1}")
                a(f"v_lshlrev_b32 v{t}, 16, v{t+1}")
                a(f"v_and_b32 v{t+1}, 0xffff0000, v{t+1}")
                a(f"v_pk_fma_f32 {R(o,2)}, {R(t,2)}, s[36:37], {R(o,2)} op_sel_hi:[1,0,1]")
                h = XR + 8 * z + 4 * x + d
                a(f"{cv} v{h}, v{o}, v{o+1}")
                a(f"v_lshlrev_b32 v{o}, 16, v{h}")
                a(f"v_and_b32 v{o+1}, 0xffff0000, v{h}")
            a(f"buffer_store_dwordx4 {R(XR+8*z+4*x,4)}, v4, s[28:31], s{16+z} offen offset:{32*x} {sf}")
    diag_mark(a, diag, 2)
    layernorm2(a, [FX, FX + 16], ST, 1)
    a(f"v_mov_b32 v{ST}, v{ST+9}")
    for z in range(2):
        rr = ST + 8 if z == 0 else ST
        for s in range(2):
            o = U + 8 * z + 4 * s
            for x in range(2):
                for hf in range(2):
                    k = FX + 16 * z + 4 * (2 * s + x) + 2 * hf
                    a(f"v_pk_mul_f32 {R(k,2)}, {R(k,2)}, {R(rr,2)} op_sel_hi:[1,0]")
                    a(f"{cv} v{o+2*x+hf}, v{k}, v{k+1}")
            a(f"buffer_store_dwordx4 {R(o,4)}, v7, s[32:35], s18 offen offset:{256*s + 64*z} {sf}")
    diag_end(a, diag, 2, 10, 11)
    a("L_f3_end:\ns_endpgm")
    return a.text(), kernel_desc(NAME, 232, 232), f"kernel={NAME} grid=(256,1,1) block=(256,1,1) lds={LDS}"
```

```python
def R(b, n=1): return f"v{b}" if n == 1 else f"v[{b}:{b+n-1}]"

def fl(x):
    import struct
    return "0x%08x" % struct.unpack("<I", struct.pack("<f", float(x)))[0]

def angles(a, step, base, mults, tmp, emit):
    prev = None
    for i, m in enumerate(mults):
        t = tmp + 3 * (i & 1)
        if m == 0: a(f"v_mov_b32 v{t}, v{base}")
        else: a(f"v_fmamk_f32 v{t}, v{step}, {fl(m)}, v{base}")
        a(f"v_cos_f32 v{t+1}, v{t}")
        a(f"v_sin_f32 v{t+2}, v{t}")
        if prev: emit(*prev)
        prev = (i, t + 1, t + 2)
    a("s_nop 0")
    emit(*prev)

def angles_f32(a, step, base, mults, cos0, sin0, tmp):
    for i, m in enumerate(mults):
        t = tmp + (i & 1)
        if m == 0: a(f"v_mov_b32 v{t}, v{base}")
        else: a(f"v_fmamk_f32 v{t}, v{step}, {fl(m)}, v{base}")
        a(f"v_cos_f32 v{cos0+i}, v{t}")
        a(f"v_sin_f32 v{sin0+i}, v{t}")

ROWM = [8 * jj + r for jj in range(4) for r in range(4)]

def planar_consts(a, step, base, tmp, outs):
    for i in range(0, 16, 2):
        for k in range(2):
            m = ROWM[i + k]; t = tmp + 3 * k
            if m == 0: a(f"v_mov_b32 v{t}, v{base}")
            else: a(f"v_fmamk_f32 v{t}, v{step}, {fl(m)}, v{base}")
            a(f"v_cos_f32 v{t+1}, v{t}")
            a(f"v_sin_f32 v{t+2}, v{t}")
        a("s_nop 0")
        for cvt, C, S, nS in outs:
            a(f"{cvt} v{C+i//2}, v{tmp+1}, v{tmp+4}")
            a(f"{cvt} v{S+i//2}, v{tmp+2}, v{tmp+5}")
            a(f"{cvt} v{nS+i//2}, -v{tmp+2}, -v{tmp+5}")

def cmul_planar(a, re, im, tc, ts, conj, cvt, ore, oim, tmp):
    n1 = "" if conj else " neg_lo:[1,0,0] neg_hi:[1,0,0]"
    n2 = " neg_lo:[1,0,0] neg_hi:[1,0,0]" if conj else ""
    for k in range(8):
        t = tmp + 4 * (k & 1)
        a(f"v_pk_mul_f32 {R(t,2)}, {R(re+2*k,2)}, {R(tc+2*k,2)}")
        a(f"v_pk_mul_f32 {R(t+2,2)}, {R(im+2*k,2)}, {R(tc+2*k,2)}")
        a(f"v_pk_fma_f32 {R(t,2)}, {R(im+2*k,2)}, {R(ts+2*k,2)}, {R(t,2)}{n1}")
        a(f"v_pk_fma_f32 {R(t+2,2)}, {R(re+2*k,2)}, {R(ts+2*k,2)}, {R(t+2,2)}{n2}")
        a(f"{cvt} v{ore+k}, v{t}, v{t+1}")
        a(f"{cvt} v{oim+k}, v{t+2}, v{t+3}")

def dft_planar(a, ty, dre, dim, xre, xim, C, Sre, Sim, data_is_a):
    def m(d, k, x, first):
        A, B = (x, k) if data_is_a else (k, x)
        a(f"v_mfma_f32_32x32x16_{ty} {R(d,16)}, {R(A,4)}, {R(B,4)}, {'0' if first else R(d,16)}")
    for t in range(2):
        m(dre, C + 4 * t, xre + 4 * t, t == 0)
        m(dim, C + 4 * t, xim + 4 * t, t == 0)
    for t in range(2):
        m(dre, Sre + 4 * t, xim + 4 * t, False)
        m(dim, Sim + 4 * t, xre + 4 * t, False)

def wave_sum(a, vals, tmps):
    for mod in ("quad_perm:[1,0,3,2]", "quad_perm:[2,3,0,1]", "row_half_mirror", "row_mirror"):
        for v in vals:
            a(f"v_add_f32_dpp v{v}, v{v}, v{v} {mod} row_mask:0xf bank_mask:0xf")
    for sw in ("v_permlane16_swap_b32", "v_permlane32_swap_b32"):
        for v, t in zip(vals, tmps): a(f"v_mov_b32 v{t}, v{v}")
        for v, t in zip(vals, tmps): a(f"{sw} v{v}, v{t}")
        for v, t in zip(vals, tmps): a(f"v_add_f32 v{v}, v{v}, v{t}")

def round_bf16(a, v):
    a(f"v_cvt_pk_bf16_f32 v{v}, v{v}, v{v}")
    a(f"v_and_b32 v{v}, 0xffff0000, v{v}")

def layernorm2(a, rows, st, scale):
    for k, b in enumerate(rows):
        s = st + 2 * k
        a(f"v_pk_add_f32 {R(s,2)}, {R(b,2)}, {R(b+2,2)}")
        for i in range(2, 8): a(f"v_pk_add_f32 {R(s,2)}, {R(s,2)}, {R(b+2*i,2)}")
    a(f"v_add_f32 v{st}, v{st}, v{st+1}")
    a(f"v_add_f32 v{st+2}, v{st+2}, v{st+3}")
    wave_sum(a, [st, st + 2], [st + 1, st + 3])
    for k in range(2):
        a(f"v_mul_f32 v{st+2*k}, {fl(1/1024)}, v{st+2*k}")
        a(f"v_mov_b32 v{st+4+2*k}, v{st+2*k}")
        round_bf16(a, st + 4 + 2 * k)
    for k, b in enumerate(rows):
        m = st + 4 + 2 * k
        for i in range(8):
            a(f"v_pk_add_f32 {R(b+2*i,2)}, {R(b+2*i,2)}, {R(m,2)} op_sel_hi:[1,0] neg_lo:[0,1] neg_hi:[0,1]")
        a(f"v_sub_f32 v{st+8+k}, v{st+2*k}, v{m}")
    for k, b in enumerate(rows):
        s = st + 2 * k
        a(f"v_pk_mul_f32 {R(s,2)}, {R(b,2)}, {R(b,2)}")
        for i in range(1, 8): a(f"v_pk_fma_f32 {R(s,2)}, {R(b+2*i,2)}, {R(b+2*i,2)}, {R(s,2)}")
    a(f"v_add_f32 v{st}, v{st}, v{st+1}")
    a(f"v_add_f32 v{st+2}, v{st+2}, v{st+3}")
    wave_sum(a, [st, st + 2], [st + 1, st + 3])
    for k in range(2):
        s, d = st + 2 * k, st + 8 + k
        a(f"v_mul_f32 v{s}, {fl(1/1024)}, v{s}")
        a(f"v_fma_f32 v{s}, -v{d}, v{d}, v{s}")
        a(f"v_max_f32 v{s}, 0, v{s}")
        round_bf16(a, s)
        a(f"v_add_f32 v{s}, {fl(1e-5)}, v{s}")
        round_bf16(a, s)
        a(f"v_sqrt_f32 v{s}, v{s}")
    for k in range(2):
        s, d = st + 2 * k, st + 8 + k
        round_bf16(a, s)
        a(f"v_rcp_f32 v{d}, v{s}")
    if scale != 1:
        for k in range(2): a(f"v_mul_f32 v{st+8+k}, {fl(scale)}, v{st+8+k}")
```

```python
from asmlib import *

NAME = "gemm1_kernel"
STAGE = 28672
PART = 14336
LDS = 4 * STAGE
ADIST = 6
WD = 6

def acc(f, j):
    b = 32 + 4 * (f * 4 + j)
    return f"v[{b}:{b+3}]"
def aset(u, j):
    b = (u % 8) * 16 + 4 * j
    return f"a[{b}:{b+3}]"
def wreg(gf, x=None):
    b = 128 + 4 * (gf % 7)
    return f"a[{b}:{b+3}]" if x is None else f"a[{b+2*x}:{b+2*x+1}]"

def gen(diag=False, store_flags=""):
    a = Asm()
    kernel_head(a, NAME)
    diag_begin(a, diag)
    a("""s_cmp_ge_u32 s2, 256
    s_cbranch_scc1 L_g1_end
    s_load_dwordx4 s[4:7], s[0:1], 32
    s_load_dwordx2 s[8:9], s[0:1], 72
    v_lshrrev_b32 v1, 6, v0
    v_and_b32 v0, 63, v0
    s_and_b32 s10, s2, 7
    s_lshl_b32 s10, s10, 2
    s_bfe_u32 s11, s2, 0x20003
    v_readfirstlane_b32 s13, v1
    s_add_u32 s10, s10, s11
    s_lshr_b32 s12, s2, 5""")
    a("""s_and_b32 s14, s13, 1
    s_mul_i32 s14, s14, 448
    s_and_b32 s15, s10, 1
    s_lshl_b32 s15, s15, 1
    s_mov_b32 s16, 0x4925
    s_movk_i32 s17, 7168""")
    for i in range(7):
        a(f"""v_add_u32 v2, s14, v0
        v_add_u32 v2, {64*i}, v2
        v_mul_u32_u24 v3, s16, v2
        v_lshrrev_b32 v3, 18, v3
        v_mul_u32_u24 v4, 14, v3
        v_sub_u32 v4, v2, v4
        v_add_u32 v4, s15, v4
        v_subrev_u32 v5, 14, v4
        v_min_u32 v4, v4, v5
        v_lshlrev_b32 v4, 4, v4
        v_mad_u32_u24 v{8+i}, v3, s17, v4""")
        if i & 3:
            a(f"v_subrev_u32 v{8+i}, {1024*(i&3)}, v{8+i}")
    a("v_lshlrev_b32 v16, 4, v0")
    for j in range(1, 4):
        a(f"v_add_u32 v{16+j}, {32768*j}, v16")
    a("""v_lshrrev_b32 v2, 2, v0
    v_mul_u32_u24 v2, 224, v2
    v_and_b32 v3, 3, v0
    v_lshl_add_u32 v20, v3, 3, v2""")
    a(f"v_add_u32 v21, {2*STAGE}, v20")
    a("s_waitcnt lgkmcnt(0)")
    a("""s_cmp_lt_u32 s13, 2
    s_cselect_b32 s20, s4, s6
    s_cselect_b32 s21, s5, s7""")
    srd(a, 20, "s20", "s21", 7340032)
    a(f"""s_lshl_b32 s14, s12, 2
    s_add_u32 s14, s14, s13
    s_lshl_b32 s14, s14, 17
    s_add_u32 s14, s14, {WS_LN2}
    s_add_u32 s24, s8, s14
    s_addc_u32 s25, s9, 0""")
    srd(a, 24, "s24", "s25", 131072)
    a("""s_mul_i32 s28, s10, 224
    s_mov_b32 s29, 0
    s_mul_i32 s30, s13, 7168""")

    vm = VM()
    def dma_ops(s):
        ops = []
        for i in range(7):
            pre = []
            if i in (0, 4):
                pre.append(f"s_add_u32 m0, s30, {(s % 4) * STAGE + 1024 * i}")
            ins = f"buffer_load_dwordx4 v{8+i}, s[20:23], s28 offen offset:{1024*(i&3)} lds"
            post = [f"s_add_u32 s28, s28, {64*7168}"] if i == 6 else []
            ops.append((pre, ins, post, ("D", s)))
        return ops
    def act_ops(u):
        ops = []
        for j in range(4):
            ins = f"buffer_load_dwordx4 {aset(u, j)}, v{16+j}, s[24:27], s29 offen offset:{1024*(u&3)}"
            post = ["s_add_u32 s29, s29, 4096"] if (j == 3 and (u & 3) == 3) else []
            ops.append(([], ins, post, ("A", u)))
        return ops
    def emit_now(ops):
        for pre, ins, post, tag in ops:
            for p in pre:
                a(p); a("s_nop 0")
            a(ins); vm.issue(tag)
            for p in post: a(p)
    def wread(gf):
        s, f = divmod(gf, 28)
        ks, ff = divmod(f, 14)
        t, part = divmod(ff, 2)
        base = "v20" if (s % 4) < 2 else "v21"
        out = []
        for x in range(2):
            off = (s % 2) * STAGE + part * PART + (32 * ks + 16 * x) * 224 + 32 * t
            out.append(f"ds_read_b64_tr_b16 {wreg(gf, x)}, {base} offset:{off}")
        return out

    d2 = dma_ops(2)
    order = [dma_ops(0), act_ops(0), act_ops(1), dma_ops(1), act_ops(2), act_ops(3), d2[:6], act_ops(4), act_ops(5)]
    for o in order: emit_now(o)
    for r in range(32, 256):
        a(f"v_mov_b32 v{r}, 0")
    a("s_mov_b32 s31, 0")
    a(f"s_waitcnt vmcnt({vm.need([('D', 0)])})")
    a("s_barrier")
    for gf in range(WD):
        for r in wread(gf): a(r)

    pend = [d2[6]]
    def stage(s, out):
        for f in range(28):
            gf = s * 28 + f
            ks, ff = divmod(f, 14)
            u = 2 * s + ks
            fill = [[], [], [], []]
            head = []
            if ff == 0:
                head.append(("vm", vm.need([("A", u)])))
            head.append(("t", f"s_waitcnt lgkmcnt({2*(WD-1)})"))
            if f == 28 - WD:
                head.append(("vm", vm.need([("D", s + 1)])))
                head.append(("t", "s_barrier"))
                pend.extend(dma_ops(s + 3))
            rd = wread(gf + WD)
            fill[0].append(rd[0]); fill[1].append(rd[1])
            if pend:
                d = pend.pop(0)
                if d[0]: fill[0].append(d[0][0])
                fill[2].append(d[1]); vm.issue(d[3])
                fill[2].extend(d[2])
            if ff < 4:
                vmem = act_ops(u + ADIST)[ff]
                fill[3].append(vmem[1]); vm.issue(vmem[3])
                fill[3].extend(vmem[2])
            if s % 4 == 0 and f == 20:
                fill[3].append("s_cmp_eq_u32 s31, 3")
                fill[3].append("s_cselect_b32 s26, 0, s26")
            if s % 4 == 1 and f == 5:
                fill[3].append("s_cmp_eq_u32 s31, 3")
                fill[3].append("s_cselect_b32 s22, 0, s22")
            if s % 4 == 3 and f == 27:
                fill[2].append("s_add_u32 s31, s31, 1")
                fill[2].append("s_cmp_lt_u32 s31, 4")
            out.extend(head)
            for j in range(4):
                out.append(("t", f"v_mfma_f32_16x16x32_bf16 {acc(ff, j)}, {wreg(gf)}, {aset(u, j)}, {acc(ff, j)}"))
                for x in fill[j]: out.append(("t", x))
    iters = []
    for it in range(4):
        out = []
        for s in range(4 * it, 4 * it + 4): stage(s, out)
        iters.append(out)
    diag_mark(a, diag, 1)
    if diag: a("s_waitcnt lgkmcnt(0)")
    a(".p2align 6")
    a("L_g1_loop:")
    for items in zip(*iters):
        assert len(set(i[0] for i in items)) == 1
        if items[0][0] == "vm":
            n = min(i[1] for i in items); assert n <= 63
            a(f"s_waitcnt vmcnt({n})")
        else:
            assert len(set(i[1] for i in items)) == 1, items
            a(items[0][1])
    a("s_cbranch_scc1 L_g1_loop")
    diag_mark(a, diag, 2)

    a(f"""s_lshl_b32 s14, s12, 2
    s_add_u32 s14, s14, s13
    s_mul_i32 s14, s14, {4*112*1024}
    s_add_u32 s14, s14, {WS_HH}
    s_add_u32 s24, s8, s14
    s_addc_u32 s25, s9, 0""")
    srd(a, 24, "s24", "s25", 4 * 112 * 1024)
    a("""s_and_b32 s15, s10, 1
    s_mul_i32 s14, s10, 7
    s_add_u32 s28, s14, s15
    s_lshl_b32 s28, s28, 9
    s_add_u32 s16, s28, 3072
    s_sub_u32 s17, s28, 1016
    s_cmp_eq_u32 s15, 0
    s_cselect_b32 s29, s16, s17""")
    for j in range(1, 4):
        a(f"v_add_u32 v{16+j}, {112*1024*j}, v16")
    def r(f, j): return 32 + 4 * (f * 4 + j)
    for p in range(4):
        for j in range(4):
            ts = [2 * p, 2 * p + 1] if p < 3 else [6]
            o = r(2 * ts[0] + 1, j)
            for t in ts:
                g, u_ = r(2 * t, j), r(2 * t + 1, j)
                a(f"v_pk_mul_f32 v[{g}:{g+1}], v[{g}:{g+1}], v[{u_}:{u_+1}]")
                a(f"v_pk_mul_f32 v[{g+2}:{g+3}], v[{g+2}:{g+3}], v[{u_+2}:{u_+3}]")
            for n, t in enumerate(ts):
                g = r(2 * t, j)
                a(f"v_cvt_pk_bf16_f32 v{o+2*n}, v{g}, v{g+1}")
                a(f"v_cvt_pk_bf16_f32 v{o+2*n+1}, v{g+2}, v{g+3}")
            if p < 3:
                a(f"buffer_store_dwordx4 v[{o}:{o+3}], v{16+j}, s[24:27], s28 offen offset:{1024*p} {store_flags}")
            else:
                a(f"buffer_store_dwordx2 v[{o}:{o+1}], v{16+j}, s[24:27], s29 offen {store_flags}")
    diag_end(a, diag, 3, 8, 9)
    a("L_g1_end:")
    a("s_endpgm")
    return a.text(), kernel_desc(NAME, 512, 256), f"kernel={NAME} grid=(256,1,1) block=(256,1,1) lds={LDS}"
```

```python
from asmlib import *

NAME = "gemm2_kernel"
STAGE = 16384
LDS = 4 * STAGE
WD = 6

def gen(diag=False, store_flags="", adist=12):
    def acc(nt, j):
        b = 64 + 4 * (nt * 2 + j); return f"v[{b}:{b+3}]"
    def aset(u, j):
        b = (u % 16) * 8 + 4 * j; return f"a[{b}:{b+3}]"
    def wreg(gf, x=None):
        b = 32 + 4 * (gf % 8)
        return f"v[{b}:{b+3}]" if x is None else f"v[{b+2*x}:{b+2*x+1}]"
    a = Asm()
    kernel_head(a, NAME)
    diag_begin(a, diag)
    a("""s_cmp_ge_u32 s2, 256
    s_cbranch_scc1 L_g2_end
    s_load_dwordx4 s[4:7], s[0:1], 48
    s_load_dwordx2 s[8:9], s[0:1], 72
    v_lshrrev_b32 v1, 6, v0
    v_and_b32 v0, 63, v0
    s_bfe_u32 s12, s2, 0x20001
    s_lshl_b32 s12, s12, 2
    s_bfe_u32 s11, s2, 0x20003
    v_readfirstlane_b32 s13, v1
    s_add_u32 s12, s12, s11
    s_and_b32 s10, s2, 1
    s_lshl_b32 s10, s10, 3
    s_lshr_b32 s11, s2, 5
    s_add_u32 s10, s10, s11""")
    a("""v_lshrrev_b32 v2, 3, v0
    v_lshlrev_b32 v2, 11, v2
    v_bfe_u32 v3, v0, 4, 2
    v_lshlrev_b32 v3, 1, v3
    v_and_b32 v4, 7, v0
    v_xor_b32 v3, v3, v4
    v_lshl_add_u32 v8, v3, 4, v2""")
    for i in range(1, 4):
        a(f"v_add_u32 v{8+i}, {15360*i}, v8")
    a(f"""v_lshlrev_b32 v12, 4, v0
    v_add_u32 v13, {112*1024}, v12
    v_lshrrev_b32 v2, 2, v0
    v_and_b32 v3, 3, v0
    v_lshlrev_b32 v3, 3, v3
    v_lshl_add_u32 v3, v2, 7, v3
    v_bfe_u32 v4, v0, 3, 2""")
    for nt in range(4):
        a(f"v_xor_b32 v5, {nt}, v4")
        a(f"v_lshl_add_u32 v{16+nt}, v5, 5, v3")
    a("s_waitcnt lgkmcnt(0)")
    srd(a, 20, "s4", "s5", 7340032)
    a(f"""s_lshl_b32 s14, s12, 2
    s_add_u32 s14, s14, s13
    s_mul_i32 s15, s14, {2*112*1024}
    s_add_u32 s15, s15, {WS_HH}
    s_add_u32 s24, s8, s15
    s_addc_u32 s25, s9, 0""")
    srd(a, 24, "s24", "s25", 2 * 112 * 1024)
    a("""s_lshl_b32 s28, s10, 7
    s_lshl_b32 s15, s13, 16
    s_add_u32 s28, s28, s15
    s_mov_b32 s29, 0
    s_lshl_b32 s30, s13, 12""")

    vm = VM()
    def dma_ops(s):
        ops = []
        for i in range(4):
            pre = [f"s_add_u32 m0, s30, {(s % 4) * STAGE}"] if i == 0 else []
            ins = f"buffer_load_dwordx4 v{8+i}, s[20:23], s28 offen offset:{1024*i} lds"
            post = [f"s_add_u32 s28, s28, {128*2048}"] if i == 3 else []
            ops.append((pre, ins, post, ("D", s)))
        return ops
    def act_ops(u):
        ops = []
        for j in range(2):
            ins = f"buffer_load_dwordx4 {aset(u, j)}, v{12+j}, s[24:27], s29 offen offset:{1024*(u&3)}"
            post = ["s_add_u32 s29, s29, 4096"] if (j == 1 and (u & 3) == 3) else []
            ops.append(([], ins, post, ("A", u)))
        return ops
    def emit_now(ops):
        for pre, ins, post, tag in ops:
            for p in pre:
                a(p); a("s_nop 0")
            a(ins); vm.issue(tag)
            for p in post: a(p)
    def wread(gf):
        s, f = divmod(gf, 16)
        ks, nt = divmod(f, 4)
        return [f"ds_read_b64_tr_b16 {wreg(gf, x)}, v{16+nt} offset:{(s%4)*STAGE + (32*ks+16*x)*128}" for x in range(2)]

    for s in range(3):
        emit_now(dma_ops(s))
        for u in range(4 * s, min(4 * s + 4, adist)): emit_now(act_ops(u))
    for u in range(12, adist): emit_now(act_ops(u))
    a(f"""s_add_u32 s32, s8, {WS_H}
    s_addc_u32 s33, s9, 0""")
    srd(a, 32, "s32", "s33", 4194304)
    srd(a, 36, "s6", "s7", 4194304)
    a("""v_bfe_u32 v2, v0, 2, 1
    v_lshlrev_b32 v2, 21, v2
    v_and_b32 v3, 3, v0
    v_bfe_u32 v4, v0, 3, 1
    v_lshl_add_u32 v3, v4, 2, v3
    v_lshl_add_u32 v2, v3, 11, v2
    v_bfe_u32 v3, v0, 4, 1
    v_lshl_add_u32 v2, v3, 5, v2
    v_bfe_u32 v3, v0, 5, 1
    v_lshl_add_u32 v14, v3, 4, v2
    v_add_u32 v15, 16384, v14
    s_lshl_b32 s40, s14, 15
    s_lshl_b32 s15, s10, 7
    s_add_u32 s40, s40, s15""")
    for r in range(64, 96):
        a(f"v_mov_b32 v{r}, 0")
    a("s_mov_b32 s31, 0")
    a(f"s_waitcnt vmcnt({vm.need([('D', 0)])})")
    a("s_barrier")
    for gf in range(WD):
        for r in wread(gf): a(r)

    pend = []
    last_a = 112 - adist
    def stage(s, out):
        for f in range(16):
            gf = s * 16 + f
            ks, nt = divmod(f, 4)
            u = 4 * s + ks
            fill = [[], []]
            head = []
            if nt == 0:
                head.append(("vm", vm.need([("A", u)])))
            if f % 2 == 0:
                head.append(("t", f"s_waitcnt lgkmcnt({2*(WD-2)})"))
            if f == 16 - WD:
                head.append(("vm", vm.need([("D", s + 1)])))
                head.append(("t", "s_barrier"))
                pend.extend(dma_ops(s + 3))
            rd = wread(gf + WD)
            fill[0].append(rd[0]); fill[1].append(rd[1])
            if nt < 2:
                vmem = act_ops(u + adist)[nt]
                fill[0].append(vmem[1]); vm.issue(vmem[3])
                fill[0].extend(vmem[2])
            if pend:
                d = pend.pop(0)
                if d[0]: fill[0].insert(0, d[0][0])
                fill[1].append(d[1]); vm.issue(d[3])
                fill[1].extend(d[2])
            if nt == 3 and u % 16 == (last_a - 1) % 16:
                fill[1].append(f"s_cmp_eq_u32 s31, {(last_a - 1) // 16}")
                fill[1].append("s_cselect_b32 s26, 0, s26")
            if s % 4 == 1 and f == 3:
                fill[1].append("s_cmp_eq_u32 s31, 6")
                fill[1].append("s_cselect_b32 s22, 0, s22")
            if s % 4 == 3 and f == 15:
                fill[0].append("s_add_u32 s31, s31, 1")
                fill[0].append("s_cmp_lt_u32 s31, 7")
            out.extend(head)
            for j in range(2):
                out.append(("t", f"v_mfma_f32_16x16x32_bf16 {acc(nt, j)}, {wreg(gf)}, {aset(u, j)}, {acc(nt, j)}"))
                for x in fill[j]: out.append(("t", x))
    iters = []
    for it in range(7):
        out = []
        for s in range(4 * it, 4 * it + 4): stage(s, out)
        iters.append(out)
    diag_mark(a, diag, 1)
    if diag: a("s_waitcnt lgkmcnt(0)")
    a(".p2align 6")
    a("L_g2_loop:")
    for items in zip(*iters):
        assert len(set(i[0] for i in items)) == 1
        if items[0][0] == "vm":
            n = min(i[1] for i in items); assert n <= 63
            a(f"s_waitcnt vmcnt({n})")
        else:
            assert len(set(i[1] for i in items)) == 1, items
            a(items[0][1])
    a("s_cbranch_scc1 L_g2_loop")
    diag_mark(a, diag, 2)

    for j in range(2):
        for p in range(2):
            hreg = 96 + 4 * (2 * j + p)
            a(f"buffer_load_dwordx4 v[{hreg}:{hreg+3}], v{14+j}, s[32:35], s40 offen offset:{64*p}")
    a("s_nop 4")
    for j in range(2):
        for p in range(2):
            x, y = 64 + 4 * (4 * p + j), 64 + 4 * (4 * p + 2 + j)
            for r in range(4):
                a(f"v_permlane16_swap_b32 v{x+r}, v{y+r}")
    for j in range(2):
        for p in range(2):
            x, y = 64 + 4 * (4 * p + j), 64 + 4 * (4 * p + 2 + j)
            hreg = 96 + 4 * (2 * j + p)
            a("s_waitcnt vmcnt(3)")
            for d in range(4):
                src = x + 2 * d if d < 2 else y + 2 * (d - 2)
                a(f"v_lshlrev_b32 v2, 16, v{hreg+d}")
                a(f"v_and_b32 v3, 0xffff0000, v{hreg+d}")
                a(f"v_pk_add_f32 v[2:3], v[2:3], v[{src}:{src+1}]")
                a(f"v_cvt_pk_bf16_f32 v{hreg+d}, v2, v3")
            a(f"buffer_store_dwordx4 v[{hreg}:{hreg+3}], v{14+j}, s[36:39], s40 offen offset:{64*p} {store_flags}")
    diag_end(a, diag, 4, 8, 9)
    a("L_g2_end:")
    a("s_endpgm")
    return a.text(), kernel_desc(NAME, 256, 128), f"kernel={NAME} grid=(256,1,1) block=(256,1,1) lds={LDS}"
```

```python
import re

REG = re.compile(r"\b([vas])(\d+)\b|\b([vas])\[(\d+):(\d+)\]|\b(vcc|m0|exec)\b")
TRANS = ("v_exp_f32", "v_log_f32", "v_rcp_f32", "v_rsq_f32", "v_sqrt_f32", "v_sin_f32", "v_cos_f32")

def regs(op):
    out = set()
    for m in REG.finditer(op):
        if m.group(1): out.add((m.group(1), int(m.group(2))))
        elif m.group(3): out.update((m.group(3), i) for i in range(int(m.group(4)), int(m.group(5)) + 1))
        else: out.add((m.group(6), 0))
    return out

class I:
    def __init__(self, line):
        self.line = line
        t = line.split(";")[0].strip()
        self.mn = t.split()[0] if t else ""
        rest = t[len(self.mn):].strip()
        ops = [o.strip() for o in re.split(r",(?![^\[]*\])", rest)] if rest else []
        mn = self.mn
        self.kind = "other"; self.w = set(); self.r = set(); self.c = set(); self.passes = 0
        self.states = 1
        if mn == "s_nop": self.states = int(ops[0], 0) + 1
        if mn.startswith("v_mfma"):
            self.kind = "mfma"; self.passes = 8 if "32x32" in mn else 4
            self.w = regs(ops[0]); self.ab = regs(ops[1]) | regs(ops[2]); self.c = regs(ops[3].split()[0]); self.r = self.ab | self.c
        elif mn.startswith("v_"):
            self.kind = "valu"
            nd = 1
            if mn.startswith(("v_add_co", "v_sub_co", "v_addc_co")): nd = 2
            if mn.startswith("v_permlane") and "swap" in mn:
                self.w = regs(ops[0]) | regs(ops[1]); self.r = set(self.w)
            else:
                for o in ops[:nd]: self.w |= regs(o)
                for o in ops[nd:]: self.r |= regs(o)
                if mn.startswith(("v_fmac", "v_pk_fmac", "v_writelane")) or "_dpp" in mn: self.r |= regs(ops[0])
                if mn.startswith("v_cndmask") and len(ops) == 3: self.r.add(("vcc", 0))
        elif mn.startswith(("buffer_", "global_", "ds_")):
            self.kind = "mem"
            lds = t.endswith(" lds") or "_lds_" in mn
            self.lds = lds
            isload = ("load" in mn or "read" in mn) and not lds
            if isload:
                self.w = regs(ops[0])
                for o in ops[1:]: self.r |= regs(o)
            else:
                for o in ops: self.r |= regs(o)
            self.wide = None
            if "store_dwordx4" in mn or "store_dwordx3" in mn:
                self.wide = regs(ops[0] if mn.startswith("buffer") else ops[1])
        elif mn.startswith("s_"):
            self.kind = "salu"
            if ops and not mn.startswith(("s_cmp", "s_cbranch", "s_branch", "s_waitcnt", "s_nop", "s_barrier", "s_sleep", "s_setprio", "s_endpgm", "s_bitcmp")):
                self.w = regs(ops[0])
                for o in ops[1:]: self.r |= regs(o)
        self.trans = mn.startswith(TRANS)
        self.dpp = "_dpp" in mn
        self.perm = mn.startswith("v_permlane")
        self.rl = mn.startswith(("v_readlane", "v_readfirstlane"))

def vec(s): return {x for x in s if x[0] in "va" and x[0] != "vcc"}
def sca(s): return {x for x in s if x[0] in ("s", "vcc")}

def need(p, c):
    n = 0
    if p.kind == "valu":
        vw = vec(p.w)
        if c.kind == "mfma" and vw & c.r: n = max(n, 2)
        if c.kind == "valu":
            if (c.dpp or c.perm) and vw & c.r: n = max(n, 2)
            if c.rl and vw & c.r: n = max(n, 1)
            if p.trans and not c.trans and vw & c.r: n = max(n, 1)
            if sca(p.w) & c.r: n = max(n, 4 if c.rl else 2)
        if c.kind == "mem" and sca(p.w) & c.r: n = max(n, 5)
    if p.kind == "mfma":
        big = {4: 8, 8: 12}[p.passes]
        if c.kind == "valu":
            if p.w & (c.r | c.w): n = max(n, big)
            if p.c & c.w: n = max(n, {4: 3, 8: 7}[p.passes])
        if c.kind == "mem" and p.w & (c.r | c.w): n = max(n, big)
        if c.kind == "mfma":
            if p.w & c.ab: n = max(n, big)
            if p.w & c.c and not (p.w == c.c and p.passes == c.passes): n = max(n, big - 2)
            if p.w & c.w and not p.w & c.c: n = max(n, big)
    if p.kind == "mem" and getattr(p, "wide", None):
        if p.wide & c.w: n = max(n, 2 if c.kind == "valu" else 1)
    if p.kind == "salu" and ("m0", 0) in p.w and c.kind == "mem" and c.lds: n = max(n, 1)
    return n

def is_ins(l):
    t = l.strip()
    return bool(t) and not t.endswith(":") and not t.startswith((".", ";"))

def fix(text, report=None):
    out = []; hist = []
    for l in text.split("\n"):
        if not is_ins(l):
            out.append(l); continue
        c = I(l)
        dist = 0; pad = 0
        for p in reversed(hist):
            n = need(p, c)
            if n > dist: pad = max(pad, n - dist)
            dist += p.states
            if dist >= 12: break
        if pad:
            if report is not None: report.append((pad, l.strip()))
            nl = f"  s_nop {pad-1}"; out.append(nl); hist.append(I(nl))
        out.append(l); hist.append(c)
        if c.mn == "s_endpgm": hist = []
        hist = hist[-16:]
    return "\n".join(out)

def check_loop(text, label):
    ls = text.split("\n")
    a = ls.index(label + ":")
    b = max(i for i, l in enumerate(ls) if l.strip().startswith("s_cbranch") and l.strip().endswith(label))
    rep = []
    fix("\n".join(ls[a + 1:b + 1] + ls[a + 1:b + 1]), rep)
    assert not rep, rep
```

```python
import sys
import hazard
from asmlib import ablate
HEADER = open("sequential_preLN__spectral_gfnet__glu_gated_bilinear__prompt.s.ref").read().split("; Override launch")[0]
def assemble(parts, launches=None, verbose=False):
    s = HEADER
    for l in (launches or [p[2] for p in parts]): s += f"; @launch {l}\n"
    s += '.amdgcn_target "amdgcn-amd-amdhsa--gfx950"\n.text\n'
    for p in parts:
        rep = []
        t = hazard.fix(p[0], rep)
        if verbose: print(p[2].split()[0], "pads:", sum(r[0] for r in rep), "in", len(rep), "places")
        for l in t.split("\n"):
            if l.endswith("_loop:"): hazard.check_loop(t, l[:-1])
        s += t
    s += '.section .rodata,"a"\n'
    for p in parts: s += ".p2align 6\n" + p[1]
    return s
def full(diag, sf=""):
    import fft1, fft2, fft3, gemm1, gemm2
    return assemble([fft1.gen(diag, sf), fft2.gen(diag, sf), fft3.gen(diag, sf), gemm1.gen(diag, sf), gemm2.gen(diag)], verbose=True)
if __name__ == "__main__":
    open("full_diag.s", "w").write(full(True))
    open("full.s", "w").write(full(False))
```

```python
WS_Z    = 0
WS_W    = 129 << 15
WS_BETA = 258 << 15
BETA_STRIDE = 4224
WS_ZP   = 10 << 20
WS_LN2  = 14 << 20
WS_H    = 18 << 20
WS_HH   = 22 << 20
WS_XCH  = 38 << 20
WS_DIAG = 64 << 20

class Asm:
    def __init__(self):
        self.l = []
    def __call__(self, s):
        for x in s.split("\n"):
            x = x.rstrip()
            if x.strip():
                self.l.append(x.strip() if x.endswith(":") or x.startswith(".") else "  " + x.strip())
    def text(self):
        return "\n".join(self.l) + "\n"

def kernel_head(a, name):
    a(f".globl {name}\n.p2align 8\n.type {name},@function\n{name}:")

def code_prefetch(a, name, end_label, vt, vd):
    a(f"""s_getpc_b64 s[70:71]
    L_pc_{name}:
    v_lshlrev_b32 v{vt}, 6, v0
    v_min_u32 v{vt}, {end_label}-L_pc_{name}, v{vt}
    global_load_dword v{vd}, v{vt}, s[70:71]""")

def kernel_desc(name, vgpr, acc, sgpr=96):
    return f""".amdhsa_kernel {name}
  .amdhsa_next_free_vgpr {vgpr}
  .amdhsa_next_free_sgpr {sgpr}
  .amdhsa_accum_offset {acc}
  .amdhsa_group_segment_fixed_size 0
  .amdhsa_kernarg_size 80
  .amdhsa_user_sgpr_count 2
  .amdhsa_user_sgpr_kernarg_segment_ptr 1
  .amdhsa_system_sgpr_workgroup_id_x 1
  .amdhsa_float_denorm_mode_32 3
.end_amdhsa_kernel
"""

def srd(a, d, base_lo, base_hi, nbytes):
    if base_lo != f"s{d}":
        a(f"s_mov_b32 s{d}, {base_lo}")
    a(f"s_and_b32 s{d+1}, {base_hi}, 0xffff")
    a(f"s_mov_b32 s{d+2}, {nbytes}")
    a(f"s_mov_b32 s{d+3}, 0x20000")

DS = 76
def diag_begin(a, diag):
    diag_mark(a, diag, 0)

def diag_mark(a, diag, k):
    if diag:
        a(f"s_memrealtime s[{DS+4*k}:{DS+4*k+1}]")
        a(f"s_memtime s[{DS+4*k+2}:{DS+4*k+3}]")

def diag_end(a, diag, slot, ws_lo, ws_hi, vt=2):
    if not diag:
        return
    a(f"s_waitcnt vmcnt(0) lgkmcnt(0)")
    diag_mark(a, diag, 3)
    a(f"s_lshl_b32 s{DS+16}, s2, 6")
    a(f"s_add_u32 s{DS+16}, s{DS+16}, {WS_DIAG + slot*32768}")
    a(f"s_waitcnt lgkmcnt(0)")
    for j in range(16):
        a(f"v_mov_b32 v{vt+j}, s{DS+j}")
    a(f"v_mov_b32 v{vt+16}, s{DS+16}")
    a(f"s_mov_b64 exec, 1")
    for k in range(4):
        a(f"global_store_dwordx4 v{vt+16}, v[{vt+4*k}:{vt+4*k+3}], s[{ws_lo}:{ws_hi}] offset:{16*k}")

class VM:
    def __init__(self):
        self.seq = []
    def issue(self, tag):
        self.seq.append(tag)
    def need(self, tags):
        if isinstance(tags, (str, tuple)):
            tags = [tags]
        last = max(i for i, t in enumerate(self.seq) if t in tags)
        return len(self.seq) - 1 - last

def ablate(text, abl):
    out = []
    inloop = False
    for l in text.split("\n"):
        if l.endswith("_loop:"): inloop = True
        if "s_cbranch_scc1" in l and "_loop" in l: inloop = False
        drop = False
        if inloop:
            if "mfma" in abl and "v_mfma" in l: drop = True
            if "dma" in abl and l.rstrip().endswith(" lds"): drop = True
            if "act" in abl and "buffer_load_dwordx4 a[" in l: drop = True
            if "ds" in abl and "ds_read" in l: drop = True
            if "bar" in abl and "s_barrier" in l: drop = True
            if "adv" in abl and ("s_add_u32 s28, s28" in l or "s_add_u32 s29, s29" in l): drop = True
        if "store" in abl and "buffer_store" in l: drop = True
        if not drop: out.append(l)
    return "\n".join(out)

def fold_loop(a, label, iters):
    assert len(set(len(x) for x in iters)) == 1, [len(x) for x in iters]
    a(".p2align 6")
    a(label + ":")
    for items in zip(*iters):
        assert len(set(i[0] for i in items)) == 1
        if items[0][0] == "vm":
            n = min(i[1] for i in items); assert n <= 63, n
            a(f"s_waitcnt vmcnt({n})")
        else:
            assert len(set(i[1] for i in items)) == 1, items
            a(items[0][1])
    a("s_cbranch_scc1 " + label)
```

```python
import re, sys
from asmlib import *
M = 4
def instrument(text, ia, ib):
    names = re.findall(r"@launch kernel=(\w+)", text)
    for k, n in enumerate(names):
        stamp = f"""{n}:
  s_cmp_lg_u32 s2, 0
  s_cbranch_scc1 L_pr_{k}
  s_load_dwordx2 s[90:91], s[0:1], 72
  s_memrealtime s[92:93]
  s_waitcnt lgkmcnt(0)
  v_mov_b32 v2, s92
  v_mov_b32 v3, {WS_DIAG + 64*k}
  global_store_dword v3, v2, s[90:91] sc1
L_pr_{k}:
"""
        text = text.replace(f"\n{n}:\n", "\n" + stamp, 1)
    last = len(names)
    body = f""".globl probe_kernel
.p2align 8
.type probe_kernel,@function
probe_kernel:
  s_cmp_lg_u32 s2, 0
  s_cbranch_scc1 L_pr_end
  s_memrealtime s[8:9]
  s_load_dwordx2 s[4:5], s[0:1], 72
  s_waitcnt lgkmcnt(0)
  v_mov_b32 v1, {WS_DIAG + 64*ia}
  v_mov_b32 v2, {WS_DIAG + 64*min(ib, last-1)}
  global_load_dword v3, v1, s[4:5] sc1
  global_load_dword v4, v2, s[4:5] sc1
  s_waitcnt vmcnt(0)
  v_readfirstlane_b32 s10, v3
  v_readfirstlane_b32 s11, v4
  {'s_mov_b32 s11, s8' if ib == last else ''}
  s_sub_u32 s10, s11, s10
  s_min_u32 s10, s10, 10000
  s_mul_i32 s10, s10, {M if ia != ib else 0}
  s_add_u32 s10, s10, s8
L_pr_w:
  s_memrealtime s[12:13]
  s_waitcnt lgkmcnt(0)
  s_sub_u32 s14, s12, s10
  s_cmp_lt_i32 s14, 0
  s_cbranch_scc1 L_pr_w
L_pr_end:
  s_endpgm
"""
    text = text.replace(".amdgcn_target", "; @launch kernel=probe_kernel grid=(1,1,1) block=(64,1,1) lds=0\n.amdgcn_target", 1)
    text = text.replace('.section .rodata,"a"\n', body + '.section .rodata,"a"\n.p2align 6\n' + kernel_desc("probe_kernel", 8, 8), 1)
    return text
if __name__ == "__main__":
    t = open(sys.argv[1]).read()
    n = len(re.findall(r"@launch kernel=", t))
    open("pr0.s", "w").write(instrument(t, 0, 0))
    for k in range(n): open(f"pr{k+1}.s", "w").write(instrument(t, k, k + 1))
```

```python
import os
GPS     = int(os.environ.get('GPS', 32768))
WOFF    = int(os.environ.get('WOFF', 0))
WS_Z    = 0
WS_W    = 128 * GPS + WOFF
WS_BETA = 17 << 19
BETA_STRIDE = 4224
WS_FLAG = WS_BETA + 2048
WS_ZP   = 10 << 20
WS_LN2  = int(os.environ.get('LN2', 14)) << 20
WS_H    = 18 << 20
WS_HH   = 22 << 20
WS_XCH  = 38 << 20
WS_DIAG = 64 << 20

class Asm:
    def __init__(self):
        self.l = []
    def __call__(self, s):
        for x in s.split("\n"):
            x = x.rstrip()
            if x.strip():
                self.l.append(x.strip() if x.endswith(":") or x.startswith(".") else "  " + x.strip())
    def text(self):
        return "\n".join(self.l) + "\n"

def kernel_head(a, name):
    a(f".globl {name}\n.p2align 8\n.type {name},@function\n{name}:")

def code_prefetch(a, name, end_label, vt, tid="v0", parts=1, start=None):
    a(f"s_getpc_b64 s[70:71]\nL_pc_{name}:")
    org = start or f"L_pc_{name}"
    if start: a(f"s_add_u32 s70, s70, {start}-L_pc_{name}\ns_addc_u32 s71, s71, 0")
    for k in range(parts):
        r = vt + 2 * k
        a(f"v_lshlrev_b32 v{r}, 6, {tid}")
        if k: a(f"v_add_u32 v{r}, {16384*k}, v{r}")
        a(f"""v_min_u32 v{r}, {end_label}-{org}, v{r}
        v_mov_b32 v{r+1}, 0
        v_lshl_add_u64 v[{r}:{r+1}], v[{r}:{r+1}], 0, s[70:71]
        global_load_dword v{r}, v[{r}:{r+1}], off""")

def kernel_desc(name, vgpr, acc, sgpr=96):
    return f""".amdhsa_kernel {name}
  .amdhsa_next_free_vgpr {vgpr}
  .amdhsa_next_free_sgpr {sgpr}
  .amdhsa_accum_offset {acc}
  .amdhsa_group_segment_fixed_size 0
  .amdhsa_kernarg_size 80
  .amdhsa_user_sgpr_count 2
  .amdhsa_user_sgpr_kernarg_segment_ptr 1
  .amdhsa_system_sgpr_workgroup_id_x 1
  .amdhsa_float_denorm_mode_32 3
.end_amdhsa_kernel
"""

def srd(a, d, base_lo, base_hi, nbytes):
    if base_lo != f"s{d}":
        a(f"s_mov_b32 s{d}, {base_lo}")
    a(f"s_and_b32 s{d+1}, {base_hi}, 0xffff")
    a(f"s_mov_b32 s{d+2}, {nbytes}")
    a(f"s_mov_b32 s{d+3}, 0x20000")

DS = 76
def diag_begin(a, diag):
    diag_mark(a, diag, 0)

def diag_mark(a, diag, k):
    if diag:
        a(f"s_memrealtime s[{DS+4*k}:{DS+4*k+1}]")
        a(f"s_memtime s[{DS+4*k+2}:{DS+4*k+3}]")

def diag_end(a, diag, slot, ws_lo, ws_hi, vt=2):
    if not diag:
        return
    a(f"s_waitcnt vmcnt(0) lgkmcnt(0)")
    diag_mark(a, diag, 3)
    a(f"s_lshl_b32 s{DS+16}, s2, 6")
    a(f"s_add_u32 s{DS+16}, s{DS+16}, {WS_DIAG + slot*32768}")
    a(f"s_waitcnt lgkmcnt(0)")
    for j in range(16):
        a(f"v_mov_b32 v{vt+j}, s{DS+j}")
    a(f"v_mov_b32 v{vt+16}, s{DS+16}")
    a(f"s_mov_b64 exec, 1")
    for k in range(4):
        a(f"global_store_dwordx4 v{vt+16}, v[{vt+4*k}:{vt+4*k+3}], s[{ws_lo}:{ws_hi}] offset:{16*k}")

class VM:
    def __init__(self):
        self.seq = []
    def issue(self, tag):
        self.seq.append(tag)
    def need(self, tags):
        if isinstance(tags, (str, tuple)):
            tags = [tags]
        last = max(i for i, t in enumerate(self.seq) if t in tags)
        return len(self.seq) - 1 - last

def ablate(text, abl):
    out = []
    inloop = False
    for l in text.split("\n"):
        if l.endswith("_loop:"): inloop = True
        if "s_cbranch_scc1" in l and "_loop" in l: inloop = False
        drop = False
        if inloop:
            if "mfma" in abl and "v_mfma" in l: drop = True
            if "dma" in abl and l.rstrip().endswith(" lds"): drop = True
            if "act" in abl and "buffer_load_dwordx4 a[" in l: drop = True
            if "ds" in abl and "ds_read" in l: drop = True
            if "bar" in abl and "s_barrier" in l: drop = True
            if "adv" in abl and ("s_add_u32 s28, s28" in l or "s_add_u32 s29, s29" in l): drop = True
        if "store" in abl and "buffer_store" in l: drop = True
        if not drop: out.append(l)
    return "\n".join(out)

def fold_loop(a, label, iters):
    assert len(set(len(x) for x in iters)) == 1, [len(x) for x in iters]
    a(".p2align 6")
    a(label + ":")
    for items in zip(*iters):
        assert len(set(i[0] for i in items)) == 1
        if items[0][0] == "vm":
            n = min(i[1] for i in items); assert n <= 63, n
            a(f"s_waitcnt vmcnt({n})")
        elif items[0][0] == "lg":
            n = min(i[1] for i in items); assert n <= 15, n
            a(f"s_waitcnt lgkmcnt({n})")
        else:
            assert len(set(i[1] for i in items)) == 1, items
            a(items[0][1])
    a("s_cbranch_scc1 " + label)
```

```python
from asmlib import *
from fftlib import *
NAME = "fft1_kernel"
LDS = 16384 + 512
X0, X1, FA, FB, ST = 4, 12, 20, 36, 52
BRE, BIM, TC, TS, C2, S2, N2 = 64, 80, 96, 112, 128, 136, 144
TMP, DRE, DIM, Z, AD = 152, 160, 176, 192, 208

def gen(diag=False, sf="sc1", pf=None, xf="", wf="", swf="sc1", fill=None, ff='sc1', tag=False, hold=False, nextpf=None, own=0, few=0, ownlate=False, rot=False, wn=4, zn=4):
    a = Asm()
    def do_fill(va, vd):
        a(f"""s_add_u32 s64, s10, {WS_ZP}
        s_addc_u32 s65, s11, 0
        s_and_b32 s65, s65, 0xffff
        s_mov_b32 s66, {256*16384}
        s_mov_b32 s67, 0x20000
        s_lshl_b32 s61, s12, 14
        v_lshlrev_b32 v{va}, 4, v1""")
        for r in range(vd, vd + 4): a(f"v_mov_b32 v{r}, -1")
        for k in range(4):
            a(f"buffer_store_dwordx4 v[{vd}:{vd+3}], v{va}, s[64:67], s61 offen {ff}\ns_add_u32 s61, s61, 4096")
        return 4
    kernel_head(a, NAME)
    diag_begin(a, diag)
    a(f"""s_cmp_ge_u32 s2, 512
    s_cbranch_scc1 L_f1_end
    s_load_dwordx4 s[4:7], s[0:1], 0
    s_load_dwordx2 s[8:9], s[0:1], 16
    s_load_dwordx2 s[10:11], s[0:1], 72""")
    weight_prefetch_load(a, pf, 44)
    if own: a(f"s_cmp_ge_u32 s2, {own}\ns_cbranch_scc1 L_f1_nopf")
    if not ownlate: code_prefetch(a, NAME, "L_f1_end", AD + 14)
    a("L_f1_nopf:")
    a(f"""v_lshrrev_b32 v2, 6, v0
    v_mov_b32 v1, v0
    v_and_b32 v0, 63, v0
    v_readfirstlane_b32 s13, v2
    s_and_b32 s12, s2, 255
    s_lshr_b32 s14, s12, 5
    s_and_b32 s15, s12, 31
    s_lshl_b32 s16, s14, 7
    s_add_u32 s16, s16, s15
    s_bfe_u32 s18, s12, 0x20002
    s_lshl_b32 s19, s12, 7
    s_mul_i32 s38, s13, {32*GPS}
    s_add_u32 s56, s38, s19
    s_add_u32 s57, s56, {8*GPS}
    s_add_u32 s58, s57, {8*GPS}
    s_add_u32 s59, s58, {8*GPS}
    s_mov_b32 s34, {WS_ZP - WS_W}
    s_mov_b32 s35, 0x20000
    s_cmp_ge_u32 s2, 256
    s_cbranch_scc1 L_f1_filter
    s_lshl_b32 s17, s13, 5
    s_add_u32 s16, s16, s17
    s_lshl_b32 s16, s16, 11
    s_add_u32 s17, s16, {1024*2048}
    v_lshlrev_b32 v2, 4, v0
    s_mov_b32 s22, 4194304
    s_mov_b32 s23, 0x20000
    s_waitcnt lgkmcnt(0)
    s_mov_b32 s20, s4
    s_and_b32 s21, s5, 0xffff""")
    for b, s in ((X0, 16), (X1, 17)):
        a(f"buffer_load_dwordx4 {R(b,4)}, v2, s[20:23], s{s} offen {xf}")
        a(f"buffer_load_dwordx4 {R(b+4,4)}, v2, s[20:23], s{s} offen offset:1024 {xf}")
    nm = do_fill(AD + 13, Z) if fill == 'main' else 0
    if ownlate:
        code_prefetch(a, NAME, "L_f1_end", AD + 14, tid="v1"); nm += 1
    if nextpf == "fft":
        a(f"s_cmp_ge_u32 s2, {few}\ns_cbranch_scc1 L_f1_nonext2")
        code_prefetch(a, "next2", "L_f2_end", 224, tid="v1", parts=3, start="main_kernel")
        a("L_f1_nonext2:")
    a(f"s_add_u32 s32, s10, {WS_Z}\ns_addc_u32 s33, s11, 0\ns_and_b32 s33, s33, 0xffff")
    a(f"""v_and_b32 v56, 31, v0
    v_cvt_f32_u32 v56, v56
    v_lshrrev_b32 v57, 5, v0
    v_cvt_f32_u32 v57, v57
    v_mul_f32 v57, 4.0, v57
    v_mul_f32 v58, {fl(1/32)}, v56
    v_mul_f32 v59, v57, v58""")
    def e1(i, c, s):
        a(f"v_cvt_pk_f16_f32 v{BRE+i}, v{c}, v{s}")
        a(f"v_cvt_pk_f16_f32 v{BIM+i}, -v{s}, v{c}")
    angles(a, 58, 59, [8 * t + r for t in range(4) for r in (0, 2, 1, 3)], TMP, e1)
    planar_consts(a, 58, 59, TMP, [("v_cvt_pk_f16_f32", C2, S2, N2)])
    a(f"v_mul_f32 v58, {fl(1/1024)}, v56\nv_mul_f32 v59, v57, v58")
    angles_f32(a, 58, 59, ROWM, TC, TS, TMP)
    RC, RS = 224, 228
    if rot:
        a(f"""s_lshl_b32 s38, s14, 7
        s_add_u32 s38, s38, s15
        v_and_b32 v2, 1, v0
        v_cvt_f32_u32 v2, v2
        v_mul_f32 v58, {fl(32/2048)}, v2
        v_cvt_f32_u32 v59, s38
        v_mul_f32 v59, {fl(1/2048)}, v59
        v_mul_f32 v59, v59, v2""")
        def er(i, c, s):
            a(f"v_cvt_pk_f16_f32 v{RC+i}, v{c}, v{c}")
            a(f"v_cvt_pk_f16_f32 v{RS+i}, v{s}, -v{s}")
        angles(a, 58, 59, [0, 1, 2, 3], TMP, er)
    a(f"""s_lshl_b32 s38, s13, 12
    v_lshlrev_b32 v{AD}, 5, v0
    v_add_u32 v{AD}, s38, v{AD}
    v_and_b32 v2, 31, v0
    v_lshlrev_b32 v2, 2, v2
    v_lshrrev_b32 v3, 5, v0
    v_lshl_add_u32 v2, v3, 9, v2
    v_add_u32 v{AD+1}, s38, v2
    v_add_u32 v{AD+2}, 128, v{AD+1}
    v_and_b32 v2, 7, v0
    v_xor_b32 v2, s18, v2
    v_lshrrev_b32 v3, 3, v0
    v_mul_u32_u24 v3, {GPS}, v3
    v_lshl_add_u32 v{AD+3}, v2, 4, v3
    s_lshl_b32 s38, s13, 7
    v_lshrrev_b32 v3, 1, v0
    v_add_u32 v3, s38, v3
    v_lshlrev_b32 v{AD+4}, 2, v3
    v_add_u32 v{AD+5}, 128, v{AD+4}
    v_sub_u32 v{AD+6}, 4096, v{AD+4}
    v_subrev_u32 v{AD+7}, 128, v{AD+6}
    v_subrev_u32 v{AD+8}, 256, v{AD+6}
    v_subrev_u32 v{AD+9}, 384, v{AD+6}
    v_cmp_gt_u32 s[36:37], 2, v1
    v_mov_b32 v2, 2048
    v_cndmask_b32 v{AD+6}, v{AD+6}, v2, s[36:37]
    v_and_b32 v2, 1, v0
    v_cmp_eq_u32 vcc, 0, v2
    v_mov_b32 v2, 0x07060302
    v_mov_b32 v3, 0x05040100
    v_cndmask_b32 v{AD+10}, v2, v3, vcc
    s_nop 0""")
    if nextpf == "fft": a(f"s_cmp_lt_u32 s2, {few}\ns_cbranch_scc1 L_f1_w\ns_waitcnt vmcnt(0)\nL_f1_w:\ns_waitcnt vmcnt(3)")
    else: a(f"s_waitcnt vmcnt({nm})")
    diag_mark(a, diag, 1)
    for src, dst in ((X0, FA), (X1, FB)):
        for i in range(8):
            a(f"v_lshlrev_b32 v{dst+2*i}, 16, v{src+i}")
            a(f"v_and_b32 v{dst+2*i+1}, 0xffff0000, v{src+i}")
    layernorm2(a, [FA, FB], ST, 1 / 512)
    for i in range(8):
        t = TMP + 4 * (i & 1)
        a(f"v_pk_fma_f32 {R(FA+2*i,2)}, {R(FA+2*i,2)}, {R(ST+8,2)}, {R(ST,2)} op_sel_hi:[1,0,0]")
        a(f"v_pk_fma_f32 {R(FB+2*i,2)}, {R(FB+2*i,2)}, {R(ST+10,2)}, {R(ST+4,2)} op_sel_hi:[1,0,0]")
        a(f"v_pk_add_f32 {R(t,2)}, {R(FA+2*i,2)}, {R(FB+2*i,2)}")
        a(f"v_pk_add_f32 {R(t+2,2)}, {R(FA+2*i,2)}, {R(FB+2*i,2)} neg_lo:[0,1] neg_hi:[0,1]")
        a(f"v_cvt_pk_f16_f32 v{Z+2*i}, v{t}, v{t+2}")
        a(f"v_cvt_pk_f16_f32 v{Z+2*i+1}, v{t+1}, v{t+3}")
        if i & 1:
            q = i >> 1
            a(f"ds_write_b128 v{AD}, {R(Z+4*q,4)} offset:{(q&1)*16 + (q>>1)*2048}")
    if diag: a("s_waitcnt lgkmcnt(0)")
    for t in range(4):
        a(f"ds_read2st64_b32 {R(FA+4*t,2)}, v{AD+1} offset0:{4*t} offset1:{4*t+1}")
        a(f"ds_read2st64_b32 {R(FA+4*t+2,2)}, v{AD+2} offset0:{4*t} offset1:{4*t+1}")
    for t in range(4):
        a(f"s_waitcnt lgkmcnt({6-2*t})")
        a(f"v_mfma_f32_32x32x16_f16 {R(DRE,16)}, {R(FA+4*t,4)}, {R(BRE+4*t,4)}, {'0' if t==0 else R(DRE,16)}")
        a(f"v_mfma_f32_32x32x16_f16 {R(DIM,16)}, {R(FA+4*t,4)}, {R(BIM+4*t,4)}, {'0' if t==0 else R(DIM,16)}")
    cmul_planar(a, DRE, DIM, TC, TS, True, "v_cvt_pk_f16_f32", Z, Z + 8, TMP)
    dft_planar(a, "f16", DRE, DIM, Z, Z + 8, C2, S2, N2, False)
    for jj in range(4):
        for r in range(4):
            a(f"v_cvt_pk_f16_f32 v{Z+4*jj+r}, v{DRE+4*jj+r}, v{DIM+4*jj+r}")
        a(f"ds_write2st64_b32 v{AD+1}, v{Z+4*jj}, v{Z+4*jj+2} offset0:{4*jj} offset1:{4*jj+1}")
        a(f"ds_write2st64_b32 v{AD+2}, v{Z+4*jj+1}, v{Z+4*jj+3} offset0:{4*jj} offset1:{4*jj+1}")
    a("s_waitcnt lgkmcnt(0)\ns_barrier")
    diag_mark(a, diag, 2)
    if diag: a("s_waitcnt lgkmcnt(0)")
    for n in range(4):
        p, m = 20 + 8 * n, 24 + 8 * n
        if n == 3: a("s_waitcnt lgkmcnt(8)")
        a(f"ds_read2st64_b32 {R(p,2)}, v{AD+4+(n&1)} offset0:{n>>1} offset1:{16+(n>>1)}")
        a(f"ds_read2st64_b32 {R(m,2)}, v{AD+6+n} offset0:0 offset1:16")
        a(f"ds_read2st64_b32 {R(p+2,2)}, v{AD+4+(n&1)} offset0:{32+(n>>1)} offset1:{48+(n>>1)}")
        a(f"ds_read2st64_b32 {R(m+2,2)}, v{AD+6+n} offset0:32 offset1:48")
    for n in range(4):
        p, m, u = 20 + 8 * n, 24 + 8 * n, 64 + 4 * n
        if n: a(f"s_waitcnt lgkmcnt({12-4*n})")
        for i in range(4):
            if n == 0: a(f"v_perm_b32 v{80+i}, v{m+i}, v{p+i}, v{AD+10}")
            a(f"v_pk_add_f16 v{u+i}, v{p+i}, v{m+i} neg_hi:[0,1]")
            a(f"v_pk_add_f16 v{p+i}, v{p+i}, v{m+i} op_sel:[1,1] op_sel_hi:[0,0] neg_hi:[1,0]")
            if n == 0: a(f"v_pk_add_f16 v{80+i}, v{80+i}, v{80+i}")
            a(f"v_cndmask_b32 v{u+i}, v{p+i}, v{u+i}, vcc")
            if n == 0: a(f"v_cndmask_b32 v{u+i}, v{u+i}, v{80+i}, s[36:37]")
            if rot:
                a(f"v_pk_mul_f16 v{p+i}, v{u+i}, v{RC+i}")
                a(f"v_pk_fma_f16 v{u+i}, v{u+i}, v{RS+i}, v{p+i} op_sel:[1,0,0] op_sel_hi:[0,1,1]")
            if tag: a(f"v_and_b32 v{u+i}, -2, v{u+i}")
        a(f"buffer_store_dwordx4 {R(u,4)}, v{AD+3}, s[32:35], s{56+n} offen {sf if n < zn else ''}")
    diag_end(a, diag, 0, 10, 11)
    a("s_endpgm")

    WL, WO = 8, 24
    a(f"""L_f1_filter:
    v_lshlrev_b32 v2, 2, v1
    s_mul_i32 s40, s16, 2052
    s_add_u32 s41, s40, 65664
    s_add_u32 s42, s41, 65664
    s_add_u32 s43, s42, 65664
    v_and_b32 v3, 3, v0
    v_mul_u32_u24 v4, 65664, v3
    v_lshrrev_b32 v5, 2, v0
    v_xor_b32 v5, s18, v5
    v_and_b32 v5, 1, v5
    v_mul_u32_u24 v6, 1026, v5
    v_add3_u32 v4, v4, v6, s40
    v_sub_u32 v6, 2101248, v4
    v_cmp_eq_u32 vcc, 0, v4
    v_cndmask_b32 v6, v6, v4, vcc
    v_cmp_gt_u32 vcc, 32, v1
    v_mov_b32 v7, 0x7fff0000
    v_cndmask_b32 v4, v7, v4, vcc
    v_cndmask_b32 v49, v7, v6, vcc
    s_waitcnt lgkmcnt(0)""")
    if fill == 'first': do_fill(61, 64)
    def nextcode():
        if few: a(f"s_cmp_ge_u32 s12, {few}\ns_cbranch_scc1 L_f1_nonext")
        code_prefetch(a, "next", "L_f2_end", 70, tid="v1", parts=3, start="main_kernel")
        a("L_f1_nonext:")
    if nextpf == "first": nextcode()
    srd(a, 24, "s6", "s7", 2101248)
    srd(a, 28, "s8", "s9", 2101248)
    for arr in range(2):
        for col in range(2):
            for mir in range(2):
                a(f"buffer_load_ushort v{50+4*arr+2*col+mir}, v{49 if mir else 4}, s[{24+4*arr}:{27+4*arr}], 0 offen offset:{1024*col}")
    if hold is True: a("s_waitcnt vmcnt(0)")
    for e in range(2):
        if hold == "half" and e == 1: a("s_waitcnt vmcnt(8)")
        for arr in range(2):
            for r in range(4):
                a(f"buffer_load_dword v{WL+arr*8+e*4+r}, v2, s[{24+4*arr}:{27+4*arr}], s{40+r} offen offset:{1026*e} {wf}")
    nf = do_fill(61, 64) if fill == 'late' else 0
    if nextpf == "mid":
        code_prefetch(a, "next", "L_f2_end", 70, tid="v1", parts=3, start="main_kernel"); nf += 3
    a(f"""s_add_u32 s32, s10, {WS_W}
    s_addc_u32 s33, s11, 0
    s_and_b32 s33, s33, 0xffff""")
    weight_prefetch_setup(a, pf, "s13", 44, 46)
    a(f"""s_lshl_b32 s38, s13, 12
    v_bfe_u32 v42, v0, 1, 2
    v_lshlrev_b32 v42, 4, v42
    v_lshl_add_u32 v42, v0, 6, v42
    v_add_u32 v42, s38, v42
    v_bfe_u32 v43, v0, 3, 2
    v_xor_b32 v43, v43, v3
    v_xor_b32 v43, s18, v43
    v_lshlrev_b32 v43, 4, v43
    v_and_b32 v6, 60, v0
    v_lshl_add_u32 v43, v6, 4, v43
    v_add_u32 v43, s38, v43
    v_lshrrev_b32 v6, 3, v0
    v_mul_u32_u24 v6, {GPS}, v6
    v_and_b32 v44, 7, v0
    v_lshl_add_u32 v44, v44, 4, v6
    v_lshlrev_b32 v58, 4, v5
    v_lshl_add_u32 v58, v3, 2, v58
    v_mov_b32 v5, 16384
    v_cndmask_b32 v58, v5, v58, vcc
    v_lshlrev_b32 v59, 2, v0
    v_add_u32 v59, 16512, v59
    v_mov_b32 v5, 16384
    v_cndmask_b32 v59, v5, v59, vcc
    v_and_b32 v60, 7, v0
    v_lshlrev_b32 v60, 4, v60
    s_mul_i32 s60, s12, {BETA_STRIDE}
    v_add_u32 v5, {WS_BETA - WS_W}, v60
    v_add_u32 v60, 16512, v60
    v_cmp_gt_u32 vcc, 8, v1
    v_cndmask_b32 v45, v7, v5, vcc
    s_mov_b32 s36, 0x05040100
    s_mov_b32 s37, 0x07060302""")
    a(f"s_waitcnt vmcnt({16+nf})")
    for k in range(8): a(f"v_lshlrev_b32 v{50+k}, 16, v{50+k}")
    a(f"""v_add_f32 v50, v50, v51
    v_add_f32 v52, v52, v53
    v_sub_f32 v54, v54, v55
    v_sub_f32 v56, v56, v57
    v_add_f32 v51, v50, v52
    v_sub_f32 v53, v50, v52
    v_add_f32 v55, v54, v56
    v_sub_f32 v57, v54, v56
    v_mul_f32 v51, {fl(0.25)}, v51
    v_mul_f32 v53, {fl(0.25)}, v53
    v_mul_f32 v55, {fl(0.25)}, v55
    v_mul_f32 v57, {fl(0.25)}, v57
    v_cvt_pk_bf16_f32 v40, v51, v55
    v_cvt_pk_bf16_f32 v41, v53, v57
    ds_write_b32 v59, v41
    ds_read_b128 v[52:55], v60
    s_waitcnt lgkmcnt(0)
    buffer_store_dwordx4 v[52:55], v45, s[32:35], s60 offen {swf}""")
    for e in range(2):
        a(f"s_waitcnt vmcnt({9+nf-8*e})")
        for job in range(2):
            o = WO + 4 * (2 * job + e)
            for r in range(4):
                a(f"v_perm_b32 v{o+r}, v{WL+8+e*4+r}, v{WL+e*4+r}, s{36+job}")
            if job or e: a(f"v_xor_b32 v6, {16*(2*job+e)}, v42")
            a(f"ds_write_b128 v{6 if job or e else 42}, {R(o,4)}")
    a("ds_write_b32 v58, v40")
    for n in range(4):
        a(f"ds_read_b128 {R(WL+4*n,4)}, v43 offset:{1024*n}")
    for n in range(4):
        a(f"s_waitcnt lgkmcnt({3-n})")
        a(f"buffer_store_dwordx4 {R(WL+4*n,4)}, v44, s[32:35], s{56+n} offen {swf if n < wn else ''}")
    weight_prefetch_issue(a, pf, 44, 46)
    if nextpf == "end": nextcode()
    if diag:
        diag_mark(a, diag, 1); diag_mark(a, diag, 2)
    diag_end(a, diag, 0, 10, 11)
    a("L_f1_end:\ns_endpgm")
    return a.text(), kernel_desc(NAME, 232, 232), f"kernel={NAME} grid=(512,1,1) block=(256,1,1) lds={LDS}"
```

```python
from asmlib import *
from fftlib import *
NAME = "fft2_kernel"
MIR = 49152
LDS = MIR + 2 * 8704
T, WU, BRE, BIM = 8, 24, 40, 56
TC1, TS1, TC2, TS2 = 72, 88, 104, 120
CH, SH, NH, CB, SB, NB, C4, S4, N4 = 136, 144, 152, 168, 176, 184, 192, 200, 208
TMP, DRE, DIM = 160, 216, 232

def gen(diag=False, sf="sc1", pf=None, chain=None, tag=False, early_tw=False, lb=0, top=None, fin=None, name=None, bspread=False, selfpf=True, pm=False, wlate=False, rot=False, lean=False, pfat=1, zf=''):
    NAME = name or ("fft23_kernel" if chain else globals()["NAME"])
    a = Asm()
    kernel_head(a, NAME)
    diag_begin(a, diag)
    a(f"""s_cmp_ge_u32 s2, 256
    s_cbranch_scc1 L_f2_end
    s_load_dwordx2 s[10:11], s[0:1], 72
    s_load_dwordx2 s[4:5], s[0:1], 0""")
    weight_prefetch_load(a, pf, 44)
    if top: top(a)
    if selfpf: code_prefetch(a, NAME, "L_f2_end", DIM + 10, parts=3 if top else 1)
    a(f"""v_lshrrev_b32 v2, 6, v0
    v_and_b32 v0, 63, v0
    v_lshlrev_b32 v1, 4, v0
    v_readfirstlane_b32 s13, v2
    s_and_b32 s12, s2, 0x1f0
    s_and_b32 s14, s2, 7
    s_lshl_b32 s14, s14, 1
    s_add_u32 s12, s12, s14
    s_bfe_u32 s14, s2, 0x10003
    s_add_u32 s12, s12, s14
    s_lshr_b32 s15, s12, 1
    s_mul_i32 s15, s15, {GPS}
    s_lshl_b32 s14, s14, 6
    s_add_u32 s14, s14, s15
    s_lshl_b32 s15, s13, 13
    s_add_u32 s14, s14, s15
    s_lshl_b32 s15, s13, 12
    s_add_u32 s15, s15, {lb}
    s_mov_b32 m0, s15
    v_and_b32 v{DRE}, 60, v0
    v_lshl_add_u32 v{DRE}, v{DRE}, 4, v1
    s_mov_b32 s22, {WS_ZP - WS_Z}
    s_mov_b32 s23, 0x20000
    s_waitcnt lgkmcnt(0)
    s_add_u32 s20, s10, {WS_Z}
    s_addc_u32 s21, s11, 0
    s_and_b32 s21, s21, 0xffff""")
    for i in range(8):
        if i == 4: a(f"s_add_u32 m0, s15, 16384\ns_add_u32 s14, s14, {WS_W - WS_Z - 4096}")
        a(f"buffer_load_dwordx4 v{DRE}, s[20:23], s14 offen offset:{1024*(i&3)} {zf if i < 4 else ''} lds")
        a("s_add_u32 s14, s14, 1024")
    a(f"""s_lshl_b32 s19, s12, 2
    s_add_u32 s19, s19, s13
    v_bfe_u32 v{DRE+1}, v0, 2, 2
    v_xor_b32 v{DRE+1}, s13, v{DRE+1}
    v_lshlrev_b32 v{DRE+1}, 4, v{DRE+1}
    s_movk_i32 s16, {BETA_STRIDE}
    v_mad_u32_u24 v{DRE+1}, v0, s16, v{DRE+1}
    s_mov_b32 s28, {WS_BETA - WS_Z}""")
    def beta(ts):
        a(f"s_cmp_lt_u32 s19, 2\ns_cbranch_scc0 L_f2_nobeta{ts[0]}")
        for t in ts: a(f"buffer_load_dwordx4 a[{4*t}:{4*t+3}], v{DRE+1}, s[20:23], s28 offen\ns_add_u32 s28, s28, {64*BETA_STRIDE}")
        a(f"L_f2_nobeta{ts[0]}:")
    if not bspread: beta([0, 1, 2, 3])
    nz = 0
    if top:
        a(f"""s_and_b32 s16, s2, 7
        s_lshl_b32 s16, s16, 5
        s_lshr_b32 s17, s2, 3
        s_add_u32 s16, s16, s17
        s_mul_i32 s16, s16, {BETA_STRIDE}
        s_add_u32 s16, s16, {WS_FLAG - WS_Z}
        v_mov_b64 v[{T}:{T+1}], 0
        v_mov_b64 v[{T+2}:{T+3}], 0
        s_mov_b64 exec, 0xff
        buffer_store_dwordx4 v[{T}:{T+3}], v1, s[20:23], s16 offen sc1
        s_mov_b64 exec, -1""")
        nz = 1
    a(f"s_add_u32 s24, s10, {WS_Z if tag else WS_ZP}\ns_addc_u32 s25, s11, 0")
    srd(a, 24, "s24", "s25", 128 * GPS)
    PV = DIM if pfat == 1 else 248
    weight_prefetch_setup(a, pf, "s13", 44, PV)
    a(f"""s_and_b32 s17, s13, 1
    v_and_b32 v6, 31, v0
    v_cvt_f32_u32 v2, v6
    v_lshrrev_b32 v7, 5, v0
    v_lshlrev_b32 v3, 2, v7
    v_cvt_f32_u32 v3, v3
    v_lshl_add_u32 v4, v6, 1, s17
    v_cvt_f32_u32 v4, v4
    v_lshl_add_u32 v5, v7, 3, s17
    v_cvt_f32_u32 v5, v5""")
    SP, BS = 6, 7
    if rot:
        a(f"v_mul_f32 v{SP}, {fl(1/1024)}, v2\nv_mul_f32 v{BS}, v3, v{SP}")
        if bspread: beta([0])
        angles_f32(a, SP, BS, ROWM, TC1, TS1, TMP)
        if bspread: beta([1, 2])
        a(f"v_mul_f32 v{SP}, {fl(1/32)}, v2\nv_mul_f32 v{BS}, v3, v{SP}")
        planar_consts(a, SP, BS, TMP, [("v_cvt_pk_f16_f32", CH, SH, NH), ("v_cvt_pk_bf16_f32", CB, SB, NB)], (BRE, BIM))
        if bspread: beta([3])
    else:
        a(f"v_mul_f32 v{SP}, {fl(1/64)}, v4\nv_mul_f32 v{BS}, v3, v{SP}")
        def e1(i, c, s):
            a(f"v_cvt_pk_f16_f32 v{BRE+i}, v{c}, v{s}")
            a(f"v_cvt_pk_f16_f32 v{BIM+i}, -v{s}, v{c}")
        if bspread: beta([0])
        angles(a, SP, BS, ROWM, TMP, e1)
        if bspread: beta([1])
        a(f"v_mul_f32 v{SP}, {fl(1/2048)}, v4\nv_mul_f32 v{BS}, v3, v{SP}")
        angles_f32(a, SP, BS, ROWM, TC1, TS1, TMP)
        if bspread: beta([2])
        a(f"v_mul_f32 v{SP}, {fl(1/32)}, v2\nv_mul_f32 v{BS}, v3, v{SP}")
        planar_consts(a, SP, BS, TMP, [("v_cvt_pk_f16_f32", CH, SH, NH), ("v_cvt_pk_bf16_f32", CB, SB, NB)])
        if bspread: beta([3])
    LS, CT, CT2 = 250, WU, TMP
    a(f"""v_mov_b32 v{LS}, v{SP}
    v_mul_f32 v{LS+1}, v5, v{SP}
    v_mul_f32 v{LS+1}, 0.5, v{LS+1}
    v_mul_f32 v{LS+2}, {fl(1/1024)}, v2
    v_mul_f32 v{LS+3}, v5, v{LS+2}
    v_mul_f32 v{LS+3}, 0.5, v{LS+3}""")
    late_tw = lines(lambda t: angles_f32(t, LS + 2, LS + 3, ROWM, TC2, TS2, LS + 4))
    if early_tw:
        for l in late_tw: a(l)
        late_tw = []
    if early_tw: CT = CT2
    late_c4 = lines(lambda t: planar_consts(t, LS, LS + 1, CT, [("v_cvt_pk_bf16_f32", C4, S4, N4)]))
    a(f"""v_bfe_u32 v2, v0, 2, 2
    v_xor_b32 v2, s13, v2
    v_lshlrev_b32 v2, 4, v2
    v_lshl_add_u32 v2, v0, 6, v2
    v_add_u32 v2, {lb}, v2""")
    def outaddr(a):
        a(f"""v_lshrrev_b32 v5, 5, v0
        v_lshl_add_u32 v4, v5, 2, s13
        v_and_b32 v6, 7, v0
        v_xor_b32 v4, v4, v6
        v_lshlrev_b32 v4, 4, v4
        v_and_b32 v7, 31, v0
        v_lshl_add_u32 v4, v7, 9, v4
        v_add_u32 v4, {lb+32768}, v4
        s_lshl_b32 s18, s13, 1
        v_add_u32 v5, s18, v5
        v_xor_b32 v5, v5, v6
        v_lshlrev_b32 v5, 4, v5
        s_lshl_b32 s18, s13, 10
        v_and_b32 v7, 56, v0
        v_lshl_add_u32 v5, v7, 4, v5
        v_add_u32 v5, s18, v5
        v_add_u32 v5, {lb+32768}, v5
        v_add_u32 v6, s18, v1
        s_lshl_b32 s36, s12, 14
        s_add_u32 s37, s36, 4096
        s_add_u32 s38, s36, 8192
        s_add_u32 s39, s36, 12288""")
        if tag:
            a(f"""v_and_b32 v7, 0xfc0, v6
            v_add_u32 v6, v6, v7
            s_lshr_b32 s36, s12, 1
            s_mul_i32 s36, s36, {GPS}
            s_and_b32 s37, s12, 1
            s_lshl_b32 s37, s37, 6
            s_add_u32 s36, s36, s37
            s_add_u32 s37, s36, 8192
            s_add_u32 s38, s36, 16384
            s_add_u32 s39, s36, 24576""")
    outa = lines(outaddr)
    if not lean: shadow(a, outa, 99)
    a(f"""s_nop 0
    s_cmp_lt_u32 s19, 2
    s_cbranch_scc1 L_f2_w1
    s_waitcnt vmcnt({4+nz})
    L_f2_w1:
    s_waitcnt vmcnt({8+nz})
    s_barrier""")
    if not chain:
        diag_mark(a, diag, 1)
        if diag: a("s_waitcnt lgkmcnt(0)")
    npf = weight_prefetch_issue(a, pf, 44, PV, 249) if pfat == 1 else 0
    if early_tw:
        k = 54
        late_tw, late_c4 = late_c4[:k], late_c4[k:]
    for t in range(4): a(f"ds_read_b128 {R(T+4*t,4)}, v2 offset:{4096*t}")
    for t in range(4):
        a(f"s_waitcnt lgkmcnt({3-t})")
        a(f"v_mfma_f32_32x32x16_f16 {R(DRE,16)}, {R(T+4*t,4)}, {R(BRE+4*t,4)}, {'0' if t==0 else R(DRE,16)}")
        shadow(a, late_tw, 4)
        a(f"v_mfma_f32_32x32x16_f16 {R(DIM,16)}, {R(T+4*t,4)}, {R(BIM+4*t,4)}, {'0' if t==0 else R(DIM,16)}")
        shadow(a, late_tw, 4)
    def wsync():
        a(f"s_cmp_lt_u32 s19, 2\ns_cbranch_scc1 L_f2_w2\ns_waitcnt vmcnt({npf+nz})\nL_f2_w2:\ns_waitcnt vmcnt({npf+nz+4})\ns_barrier")
        for t in range(4): a(f"ds_read_b128 {R(WU+4*t,4)}, v2 offset:{16384+4096*t}")
        return weight_prefetch_issue(a, pf, 44, PV, 249) if pfat == 2 else npf
    if not wlate: npf = wsync()
    shadow(a, late_tw, 99 if early_tw else 9 if wlate else 5)
    cmul_planar(a, DRE, DIM, TC1, TS1, True, "v_cvt_pk_f16_f32", T, T + 8, TMP)
    unpack = []
    for i in range(16):
        unpack += [f"v_lshlrev_b32 v{BRE+i}, 16, v{WU+i}", f"v_and_b32 v{BIM+i}, 0xffff0000, v{WU+i}"]
    if wlate:
        npf = wsync()
        fill = late_tw + ["s_nop 3"] * max(0, 8 - len(late_tw)) + ["s_waitcnt lgkmcnt(0)"] + unpack + late_c4
    else:
        a("s_waitcnt lgkmcnt(0)")
        fill = unpack + late_tw + late_c4
    dft_planar(a, "f16", DRE, DIM, T, T + 8, CH, SH, NH, False, fill)
    a("s_cmp_lt_u32 s19, 2\ns_cbranch_scc1 L_f2_packed")
    cmul_planar(a, DRE, DIM, BRE, BIM, False, "v_cvt_pk_bf16_f32", T, T + 8, TMP)
    a("L_f2_join:")
    dft_planar(a, "bf16", DRE, DIM, T, T + 8, CB, NB, SB, True, fill, tail=99)
    cmul_planar(a, DRE, DIM, TC2, TS2, False, "v_cvt_pk_bf16_f32", T, T + 8, TMP)
    dft_planar(a, "bf16", DRE, DIM, T, T + 8, C4, N4, S4, True, outa, tail=99)
    diag_mark(a, diag and (pm or not top), 1 if chain else 2)
    a("s_mov_b32 s17, 0x07060302" if tag else "s_mov_b32 s17, -2")
    for jj in range(4):
        for r in range(4):
            a(f"v_cvt_pk_bf16_f32 v{T+4*jj+r}, v{DRE+4*jj+r}, v{DIM+4*jj+r}")
            if tag:
                a(f"v_perm_b32 v{T+4*jj+r}, v{T+4*jj+r}, v{DRE+4*jj+r}, s17")
                a(f"v_or_b32 v{T+4*jj+r}, 1, v{T+4*jj+r}")
            elif chain: a(f"v_min_u32 v{T+4*jj+r}, s17, v{T+4*jj+r}")
        a(f"ds_write_b128 v4, {R(T+4*jj,4)} offset:{128*jj}")
    if nz: a(f"s_waitcnt vmcnt({npf})")
    a("s_waitcnt lgkmcnt(0)\ns_barrier")
    for n in range(4): a(f"ds_read_b128 {R(WU+4*n,4)}, v5 offset:{4096*n}")
    for n in range(4):
        a(f"s_waitcnt lgkmcnt({3-n})")
        a(f"buffer_store_dwordx4 {R(WU+4*n,4)}, v6, s[24:27], s{36+n} offen {sf}")
    if chain: chain(a)
    else: diag_end(a, diag, 1, 10, 11)
    a("s_endpgm")
    XR, XI, BR = TC1, TS1, CH
    bi = lambda k: NH + k if k < 8 else WU + 6 + k - 8
    a(f"""L_f2_packed:
    s_mul_i32 s14, s13, 8704
    s_add_u32 s14, s14, {lb+MIR}
    v_and_b32 v3, 31, v0
    v_lshlrev_b32 v3, 2, v3
    v_lshrrev_b32 v7, 5, v0
    v_lshl_add_u32 v3, v7, 9, v3
    s_lshl_b32 s15, s13, 2
    s_sub_u32 s15, {4096 - 3456}, s15
    s_add_u32 s15, s15, s14
    v_sub_u32 v{TMP}, s15, v3
    v_add_u32 v3, s14, v3
    v_add_u32 v7, 128, v3
    v_min_u32 v{TMP+2}, 1, v0
    v_lshl_add_u32 v{TMP+2}, v{TMP+2}, 2, s14""")
    MB = T
    for jj in range(4):
        a(f"v_add_u32 v{MB+jj}, {3072 - 1024*jj}, v{TMP}\nv_add_u32 v{MB+4+jj}, {3072 - 1024*jj + 4352}, v{TMP}")
    for k in range(16):
        jj, r = divmod(k, 4)
        o = 4 * jj + (r >> 1)
        a(f"ds_write2st64_b32 v{7 if r & 1 else 3}, v{DRE+k}, v{DIM+k} offset0:{o} offset1:{o+17}")
    a(f"ds_write2st64_b32 v{TMP+2}, v{DRE}, v{DIM} offset0:16 offset1:33")
    for k in range(0, 16, 2):
        jj, r = divmod(k, 4)
        a(f"ds_read2_b32 {R(XR+k,2)}, v{MB+jj} offset0:{96-32*r} offset1:{64-32*r}")
        a(f"ds_read2_b32 {R(XI+k,2)}, v{MB+4+jj} offset0:{96-32*r} offset1:{64-32*r}")
    a(f"s_waitcnt vmcnt({npf + (0 if bspread else nz)})")
    for k in range(16):
        a(f"v_accvgpr_read_b32 v{bi(k)}, a{k}")
        a(f"v_lshlrev_b32 v{BR+k}, 16, v{bi(k)}")
        a(f"v_and_b32 v{bi(k)}, 0xffff0000, v{bi(k)}")
    a("s_waitcnt lgkmcnt(0)")
    ng = " neg_lo:[1,0,0] neg_hi:[1,0,0]"
    for k in range(8):
        t = TMP + 4 * (k & 1)
        P = lambda b: R(b + 2 * k, 2)
        a(f"""v_pk_mul_f32 {R(t,2)}, {P(DRE)}, {P(BRE)}
        v_pk_mul_f32 {R(t+2,2)}, {P(DIM)}, {P(BRE)}
        v_pk_fma_f32 {R(t,2)}, {P(DIM)}, {P(BIM)}, {R(t,2)}{ng}
        v_pk_fma_f32 {R(t+2,2)}, {P(DRE)}, {P(BIM)}, {R(t+2,2)}
        v_pk_fma_f32 {R(t,2)}, {P(XR)}, {P(BR)}, {R(t,2)}
        v_pk_fma_f32 {R(t+2,2)}, {P(XR)}, {R(bi(2*k),2)}, {R(t+2,2)}
        v_pk_fma_f32 {R(t,2)}, {P(XI)}, {R(bi(2*k),2)}, {R(t,2)}
        v_pk_fma_f32 {R(t+2,2)}, {P(XI)}, {P(BR)}, {R(t+2,2)}{ng}
        v_cvt_pk_bf16_f32 v{T+k}, v{t}, v{t+1}
        v_cvt_pk_bf16_f32 v{T+8+k}, v{t+2}, v{t+3}""")
    a("s_nop 1\ns_branch L_f2_join")
    a("L_f2_end:\ns_endpgm")
    regs, lds = fin or (272, LDS)
    return a.text(), kernel_desc(NAME, regs, 256), f"kernel={NAME} grid=(256,1,1) block=(256,1,1) lds={lds}"
```

```python
from asmlib import *
from fftlib import *
NAME = "fft3_kernel"
IMG = 4352
HA = 160
LDS = 4 * IMG + 16384
U, XR, BRE, BIM = 8, 40, 56, 88
TC, TS, C4, S4, N4 = 120, 136, 152, 160, 168
TMP, DRE, DIM, ST, HP = 176, 184, 200, 216, 236

def gen(diag=False, sf="sc1", pf=None, xf="", shf="sc1", xlate=True, pflate=True, a=None, sleep=0, tag=False, lb=0, chain=None, early=None, where='top', pm=0, hlate=False, sl0=0, ndma=14, xpost=False, cnt=False, uat=0, dspread=None, c4early=False, trim=False):
    fused = a is not None
    if fused:
        a("; ---- phase 3\ns_lshl_b32 s12, s13, 6\nv_add_u32 v1, s12, v0")
    else:
        a = Asm()
        kernel_head(a, NAME)
        diag_begin(a, diag)
    if not fused:
        a(f"""s_cmp_ge_u32 s2, 256
        s_cbranch_scc1 L_f3_end
        s_load_dwordx2 s[4:5], s[0:1], 0
        s_load_dwordx2 s[10:11], s[0:1], 72""")
        weight_prefetch_load(a, pf, 44)
        code_prefetch(a, NAME, "L_f3_end", 232)
        a(f"""v_lshrrev_b32 v2, 6, v0
        v_mov_b32 v1, v0
        v_and_b32 v0, 63, v0
        v_readfirstlane_b32 s13, v2""")
    a(f"""s_nop 0
    s_and_b32 s12, s2, 7
    s_lshl_b32 s12, s12, 5
    s_lshr_b32 s14, s2, 3
    s_add_u32 s12, s12, s14
    v_lshrrev_b32 v2, 2, v0
    v_lshlrev_b32 v2, 14, v2
    v_and_b32 v3, 3, v0
    v_lshl_add_u32 v2, v3, 4, v2
    s_lshl_b32 s14, s12, 6
    s_mul_i32 s15, s13, {32*GPS if tag else 1 << 20}
    s_add_u32 s15, s15, s14
    v_and_b32 v4, 31, v0
    v_lshlrev_b32 v4, 6, v4
    v_lshrrev_b32 v5, 5, v0
    v_lshl_add_u32 v4, v5, 4, v4
    s_lshl_b32 s16, s12, 2
    s_add_u32 s16, s16, s13
    s_lshl_b32 s16, s16, 11
    s_add_u32 s17, s16, {1024*2048}
    s_waitcnt lgkmcnt(0)
    s_add_u32 s20, s10, {WS_Z if tag else WS_ZP}
    s_addc_u32 s21, s11, 0""")
    srd(a, 20, "s20", "s21", 128 * GPS)
    if tag:
        a(f"""v_lshrrev_b32 v2, 3, v0
        v_mul_u32_u24 v2, {GPS}, v2
        v_and_b32 v3, 7, v0
        v_lshl_add_u32 v2, v3, 4, v2
        s_add_u32 s15, s15, s14""")
    for n in range(1, 4): a(f"s_add_u32 s{59+n}, s15, {(8*GPS if tag else 16*16384)*n}")
    def uloads(fl=""):
        for n in range(4): a(f"buffer_load_dwordx4 {R(U+4*n,4)}, v{UA}, s[20:23], s{59+n if n else 15} offen {fl}")
    UA = 236 if fused else 2
    RA = 232 if trim else 2
    if fused: a(f"v_mov_b32 v{UA}, v2")
    else: uloads()
    srd(a, 24, "s4", "s5", 4194304)
    def xloads():
        for z in range(2):
            for x in range(2):
                a(f"buffer_load_dwordx4 {R(XR+8*z+4*x,4)}, v4, s[24:27], s{16+z} offen offset:{32*x} {xf}")
    if fused: xlate = xpost
    if not xlate: xloads()
    a(f"s_add_u32 s28, s10, {WS_H}\ns_addc_u32 s29, s11, 0")
    srd(a, 28, "s28", "s29", 4194304)
    a(f"s_add_u32 s32, s10, {WS_LN2}\ns_addc_u32 s33, s11, 0")
    srd(a, 32, "s32", "s33", 4194304)
    weight_prefetch_setup(a, pf, "s13", 44, 229)
    dma = early(a, DRE if where == 'top' else 238, split=where != 'top')[:ndma] if early else []
    a(f"""v_bfe_u32 v5, v0, 2, 2
    v_lshlrev_b32 v5, 3, v5
    v_bfe_u32 v6, v0, 4, 1
    v_lshl_add_u32 v5, v6, 2, v5
    v_and_b32 v6, 3, v0
    v_add_u32 v5, v5, v6
    v_cvt_f32_u32 v5, v5
    v_lshrrev_b32 v6, 5, v0
    v_cvt_f32_u32 v6, v6
    v_mul_f32 v6, 4.0, v6
    v_mul_f32 v{ST}, {fl(1/32)}, v5
    v_mul_f32 v{ST+1}, v6, v{ST}
    v_mul_f32 v{ST+1}, 0.5, v{ST+1}""")
    cv = "v_cvt_pk_bf16_f32"
    def e3(i, c, s):
        if uat == 2 and i == 8: uloads("sc1")
        o, p = BRE + 2 * i, BIM + 2 * i
        if i < 8:
            a(f"{cv} v{o}, v{c}, -v{s}\n{cv} v{o+1}, -v{s}, -v{c}\n{cv} v{p}, v{s}, v{c}\n{cv} v{p+1}, v{c}, -v{s}")
        else:
            a(f"{cv} v{o}, v{c}, v{s}\n{cv} v{o+1}, -v{s}, v{c}\n{cv} v{p}, v{s}, -v{c}\n{cv} v{p+1}, v{c}, v{s}")
    if uat == 3: uloads("sc1")
    angles(a, ST, ST + 1, [4 * t + x for t in range(8) for x in range(2)], TMP, e3)
    if uat == 1: uloads("sc1")
    a(f"v_mul_f32 v{ST}, {fl(1/1024)}, v5\nv_mul_f32 v{ST+1}, v6, v{ST}")
    angles_f32(a, ST, ST + 1, ROWM, TC, TS, TMP)
    a(f"""v_and_b32 v5, 31, v0
    v_cvt_f32_u32 v5, v5
    v_mul_f32 v{ST}, {fl(1/32)}, v5
    v_mul_f32 v{ST+1}, v6, v{ST}""")
    late = lines(lambda t: planar_consts(t, ST, ST + 1, TMP, [(cv, C4, S4, N4)]))
    if c4early: shadow(a, late, 99)
    a(f"""s_lshl_b32 s14, s13, 10
    s_add_u32 s14, s14, {lb}
    v_lshl_add_u32 v5, v0, 2, s14
    v_lshlrev_b32 v6, 2, v1
    v_add_u32 v6, {lb+4096}, v6
    v_min_u32 v6, {lb+4096+8}, v6
    s_mul_i32 s14, s13, {IMG}
    s_add_u32 s14, s14, {lb}
    v_and_b32 v2, 31, v0
    v_lshrrev_b32 v3, 5, v0
    v_lshl_add_u32 v7, v3, 6, v2
    v_lshl_add_u32 v{RA}, v7, 3, s14
    v_sub_u32 v{RA+1}, 96, v7
    v_lshl_add_u32 v{RA+1}, v{RA+1}, 3, s14
    s_lshr_b32 s18, s12, 1
    s_lshl_b32 s18, s18, 15
    s_and_b32 s19, s12, 1
    s_lshl_b32 s19, s19, 7
    s_add_u32 s56, s18, s19
    s_add_u32 s57, s56, 8192
    s_add_u32 s58, s56, 16384
    s_add_u32 s59, s56, 24576""")
    a("v_cmp_gt_u32 vcc, 2, v1\nv_mov_b32 v7, 0xffff\nv_cndmask_b32 v7, -1, v7, vcc")
    if where == 'prepoll': shadow(a, dma, 14)
    if fused:
        if sl0: a(f"s_sleep {sl0}")
        a("s_mov_b32 s63, 0")
        if uat: a("s_branch L_f3_check")
        a("L_f3_poll:")
        if sleep: a(f"s_sleep {sleep}")
        uloads("sc1")
        a("L_f3_check:")
        a("s_add_u32 s63, s63, 1")
        for n in range(4):
            b = U + 4 * n
            a(f"s_waitcnt vmcnt({3-n})")
            o3, o2, sx = ("v_bitop3_b32", "v_and_b32", " bitop3:0x80") if tag else ("v_max3_u32", "v_max_u32", "")
            if n == 0: a(f"{o3} v{UA+1}, v{b}, v{b+1}, v{b+2}{sx}\n{o2} v{UA+1}, v{UA+1}, v{b+3}")
            else: a(f"{o3} v{UA+1}, v{UA+1}, v{b}, v{b+1}{sx}\n{o3} v{UA+1}, v{UA+1}, v{b+2}, v{b+3}{sx}")
        if tag: a(f"v_and_b32 v{UA+1}, 1, v{UA+1}")
        a(f"""v_cmp_eq_u32 vcc, {0 if tag else -1}, v{UA+1}
        s_cmp_lt_u32 s63, 0x40000
        s_cselect_b64 s[64:65], vcc, 0
        s_cmp_lg_u64 s[64:65], 0
        s_cbranch_scc1 L_f3_poll""")
    for n in range(4):
        if not fused: a(f"s_waitcnt vmcnt({(3 if xlate else 7)-n})")
        if n == 0:
            diag_mark(a, diag and (pm or not chain), pm or (2 if fused else 1))
            if diag and cnt: a(f"s_waitcnt lgkmcnt(0)\ns_mov_b32 s{DS+4*pm+2}, s63\ns_mov_b32 s{DS+4*pm+3}, 0")
            for r in range(4):
                a(f"v_lshrrev_b32 v{U+16+r}, 16, v{U+r}")
                a(f"v_and_b32 v{U+r}, v7, v{U+r}")
            for r in range(0 if trim else 4): a(f"ds_write_b32 v6, v{U+16+r} offset:{IMG*r}")
            for r in ((0, 2) if trim else ()): a(f"ds_write2st64_b32 v6, v{U+16+r}, v{U+17+r} offset0:{17*r} offset1:{17*r+17}")
        for r in range(0 if trim else 4):
            a(f"ds_write_b32 v5, v{U+4*n+r} offset:{IMG*r + 256*n}")
        for r in ((0, 2) if trim else ()):
            a(f"ds_write2st64_b32 v5, v{U+4*n+r}, v{U+4*n+r+1} offset0:{17*r+n} offset1:{17*r+17+n}")
    if xlate: xloads()
    npf = 0 if pflate else weight_prefetch_issue(a, pf, 44, 229)
    a("s_waitcnt lgkmcnt(0)\ns_barrier")
    def oread(t):
        for x in range(2):
            if t < 4: a(f"ds_read_b64 {R(U+4*t+2*x,2)}, v{RA} offset:{(128*t+32*x)*8}")
            else: a(f"ds_read_b64 {R(U+4*t+2*x,2)}, v{RA+1} offset:{(416-128*(t-4)-32*x)*8}")
    LEAD = 3 if trim else 8
    for t in range(LEAD): oread(t)
    late += [l.strip() for l in f"""v_lshrrev_b32 v7, 5, v0
    v_bfe_u32 v2, v0, 1, 2
    v_xor_b32 v2, v2, v7
    v_lshlrev_b32 v2, 4, v2
    v_and_b32 v6, 31, v0
    v_lshl_add_u32 v2, v6, 6, v2
    v_add_u32 v2, s14, v2
    v_bfe_u32 v3, v0, 3, 2
    v_xor_b32 v3, v3, v0
    v_lshl_add_u32 v3, v3, 4, s14
    v_lshlrev_b32 v4, 4, v0
    v_and_b32 v5, 7, v0
    v_xor_b32 v5, s13, v5
    v_lshlrev_b32 v5, 4, v5
    v_lshl_add_u32 v5, v6, 9, v5
    v_lshl_add_u32 v5, v7, 8, v5
    v_add_u32 v5, {lb+4*IMG}, v5
    v_lshrrev_b32 v6, 5, v1
    v_xor_b32 v6, v6, v1
    v_and_b32 v6, 7, v6
    v_and_b32 v7, 0xf8, v1
    v_or_b32 v6, v6, v7
    v_lshlrev_b32 v6, 4, v6
    v_add_u32 v6, {lb+4*IMG}, v6
    v_lshlrev_b32 v7, 5, v7
    v_and_b32 v{ST}, 7, v1
    v_lshl_add_u32 v7, v{ST}, 4, v7
    v_xor_b32 v{HP-2}, 32, v2
    v_xor_b32 v{HP-1}, 64, v5""".split("\n")]
    for t in range(8):
        a(f"s_waitcnt lgkmcnt({2*(min(8, t+LEAD)-t-1)})")
        a(f"v_mfma_f32_32x32x16_bf16 {R(DRE,16)}, {R(U+4*t,4)}, {R(BRE+4*t,4)}, {'0' if t==0 else R(DRE,16)}")
        if t + LEAD < 8: oread(t + LEAD)
        shadow(a, late, 5)
        if where == 'mfma' and ndma > 8 and not dspread: shadow(a, dma, 1)
        a(f"v_mfma_f32_32x32x16_bf16 {R(DIM,16)}, {R(U+4*t,4)}, {R(BIM+4*t,4)}, {'0' if t==0 else R(DIM,16)}")
        shadow(a, late, 5)
        if where == 'mfma' and (not dspread or t < dspread[0]): shadow(a, dma, 1)
    shadow(a, late, 99)
    cmul_planar(a, DRE, DIM, TC, TS, False, cv, U, U + 8, TMP)
    FX = BRE
    if not fused: a(f"s_waitcnt vmcnt({npf})")
    elif xpost: a(f"s_waitcnt vmcnt({ndma - len(dma) if where == 'mfma' else 0})")
    if pflate: weight_prefetch_issue(a, pf, 44, 229)
    fill = []
    for z in range(2):
        for x in range(2):
            for d in range(4):
                s, r = d >> 1, 2 * (d & 1)
                o = FX + 16 * z + 4 * (2 * s + x) + r
                fill += [f"v_lshlrev_b32 v{o}, 16, v{XR+8*z+4*x+d}", f"v_and_b32 v{o+1}, 0xffff0000, v{XR+8*z+4*x+d}"]
    if dspread:
        for k in range(dspread[1]): fill.insert(4 + 10 * k, dma.pop(0))
    dft_planar(a, "bf16", DRE, DIM, U, U + 8, C4, N4, S4, True, fill, per=3, tail=99)
    a(f"s_mov_b32 s36, {fl(2.0**-13)}")
    for z in range(2):
        for x in range(2):
            for d in range(4):
                s, r = d >> 1, 2 * (d & 1)
                k = 4 * (2 * s + x) + r
                o = FX + 16 * z + k
                t = TMP + 2 * (d & 1)
                neg = " neg_lo:[0,1] neg_hi:[0,1]" if z else ""
                a(f"v_pk_add_f32 {R(t,2)}, {R(DRE+k,2)}, {R(DIM+k,2)}{neg}")
                a(f"v_pk_fma_f32 {R(o,2)}, {R(t,2)}, s[36:37], {R(o,2)} op_sel_hi:[1,0,1]")
                h = XR + 8 * z + 4 * x + d
                a(f"{cv} v{h}, v{o}, v{o+1}")
                a(f"v_lshlrev_b32 v{o}, 16, v{h}")
                a(f"v_and_b32 v{o+1}, 0xffff0000, v{h}")
            if dspread: shadow(a, dma, 1 if 2 * z + x < 3 else 14)
            if not hlate: a(f"ds_write_b128 v{HP-2 if x else 2}, {R(XR+8*z+4*x,4)} offset:{2048*z}")
    def hread():
        for k in range(4):
            a(f"ds_read_b128 {f'a[{HA+4*k}:{HA+4*k+3}]' if chain else R(U+16+4*k,4)}, v3 offset:{1024*k}")
    if not hlate: hread()
    if not fused: diag_mark(a, diag, 2)
    def hstores():
        a("s_waitcnt lgkmcnt(0)")
        for k in range(4):
            a(f"buffer_store_dwordx4 {R(U+16+4*k,4)}, v4, s[28:31], s{16+(k>>1)} offen offset:{1024*(k&1)} {shf}")
    layernorm2(a, [FX, FX + 16], ST, 1, None if chain else hstores)
    for z in range(2):
        for s in range(2):
            o = U + 8 * z + 4 * s
            for x in range(2):
                for hf in range(2):
                    k = FX + 16 * z + 4 * (2 * s + x) + 2 * hf
                    a(f"v_pk_fma_f32 {R(k,2)}, {R(k,2)}, {R(ST+8+2*z,2)}, {R(ST+4*z,2)} op_sel_hi:[1,0,0]")
                    a(f"{cv} v{o+2*x+hf}, v{k}, v{k+1}")
            a(f"ds_write_b128 v{HP-1 if z else 5}, {R(o,4)} offset:{128*s}")
    a("s_waitcnt lgkmcnt(0)\ns_barrier")
    LO = U + 16 if hlate else XR
    for n in range(4): a(f"ds_read_b128 {R(LO+4*n,4)}, v6 offset:{4096*n}")
    for n in range(4):
        a(f"s_waitcnt lgkmcnt({3-n})")
        a(f"buffer_store_dwordx4 {R(LO+4*n,4)}, v7, s[32:35], s{56+n} offen {sf}")
    if hlate:
        for z in range(2):
            for x in range(2): a(f"ds_write_b128 v{HP-2 if x else 2}, {R(XR+8*z+4*x,4)} offset:{2048*z}")
        hread()
    if chain:
        chain(a)
        return
    diag_end(a, diag, 2, 10, 11)
    if fused: return
    a("L_f3_end:\ns_endpgm")
    return a.text(), kernel_desc(NAME, 240, 240), f"kernel={NAME} grid=(256,1,1) block=(256,1,1) lds={LDS}"
```

```python
def R(b, n=1): return f"v{b}" if n == 1 else f"v[{b}:{b+n-1}]"

def fl(x):
    import struct
    return "0x%08x" % struct.unpack("<I", struct.pack("<f", float(x)))[0]

def angles(a, step, base, mults, tmp, emit):
    prev = None
    for i, m in enumerate(mults):
        t = tmp + 3 * (i & 1)
        if m == 0: a(f"v_mov_b32 v{t}, v{base}")
        else: a(f"v_fmamk_f32 v{t}, v{step}, {fl(m)}, v{base}")
        a(f"v_cos_f32 v{t+1}, v{t}")
        a(f"v_sin_f32 v{t+2}, v{t}")
        if prev: emit(*prev)
        prev = (i, t + 1, t + 2)
    a("s_nop 0")
    emit(*prev)

def angles_f32(a, step, base, mults, cos0, sin0, tmp):
    for i, m in enumerate(mults):
        t = tmp + (i & 1)
        if m == 0: a(f"v_mov_b32 v{t}, v{base}")
        else: a(f"v_fmamk_f32 v{t}, v{step}, {fl(m)}, v{base}")
        a(f"v_cos_f32 v{cos0+i}, v{t}")
        a(f"v_sin_f32 v{sin0+i}, v{t}")

ROWM = [8 * jj + r for jj in range(4) for r in range(4)]

def planar_consts(a, step, base, tmp, outs, inter=None):
    for i in range(0, 16, 2):
        for k in range(2):
            m = ROWM[i + k]; t = tmp + 3 * k
            if m == 0: a(f"v_mov_b32 v{t}, v{base}")
            else: a(f"v_fmamk_f32 v{t}, v{step}, {fl(m)}, v{base}")
            a(f"v_cos_f32 v{t+1}, v{t}")
            a(f"v_sin_f32 v{t+2}, v{t}")
        a("s_nop 0")
        for k in range(2 if inter else 0):
            a(f"v_cvt_pk_f16_f32 v{inter[0]+i+k}, v{tmp+3*k+1}, v{tmp+3*k+2}")
            a(f"v_cvt_pk_f16_f32 v{inter[1]+i+k}, -v{tmp+3*k+2}, v{tmp+3*k+1}")
        for cvt, C, S, nS in outs:
            a(f"{cvt} v{C+i//2}, v{tmp+1}, v{tmp+4}")
            a(f"{cvt} v{S+i//2}, v{tmp+2}, v{tmp+5}")
            a(f"{cvt} v{nS+i//2}, -v{tmp+2}, -v{tmp+5}")

def cmul_planar(a, re, im, tc, ts, conj, cvt, ore, oim, tmp):
    n1 = "" if conj else " neg_lo:[1,0,0] neg_hi:[1,0,0]"
    n2 = " neg_lo:[1,0,0] neg_hi:[1,0,0]" if conj else ""
    for k in range(8):
        t = tmp + 4 * (k & 1)
        a(f"v_pk_mul_f32 {R(t,2)}, {R(re+2*k,2)}, {R(tc+2*k,2)}")
        a(f"v_pk_mul_f32 {R(t+2,2)}, {R(im+2*k,2)}, {R(tc+2*k,2)}")
        a(f"v_pk_fma_f32 {R(t,2)}, {R(im+2*k,2)}, {R(ts+2*k,2)}, {R(t,2)}{n1}")
        a(f"v_pk_fma_f32 {R(t+2,2)}, {R(re+2*k,2)}, {R(ts+2*k,2)}, {R(t+2,2)}{n2}")
        a(f"{cvt} v{ore+k}, v{t}, v{t+1}")
        a(f"{cvt} v{oim+k}, v{t+2}, v{t+3}")

def lines(fn):
    from asmlib import Asm
    t = Asm(); fn(t)
    return [l for l in t.l if not l.strip().startswith("s_nop")]

def shadow(a, fill, n):
    for _ in range(n):
        if fill: a(fill.pop(0))

def dft_planar(a, ty, dre, dim, xre, xim, C, Sre, Sim, data_is_a, fill=None, per=5, tail=12):
    def m(d, k, x, first):
        A, B = (x, k) if data_is_a else (k, x)
        a(f"v_mfma_f32_32x32x16_{ty} {R(d,16)}, {R(A,4)}, {R(B,4)}, {'0' if first else R(d,16)}")
        if fill is not None: shadow(a, fill, per)
    for t in range(2):
        m(dre, C + 4 * t, xre + 4 * t, t == 0)
        m(dim, C + 4 * t, xim + 4 * t, t == 0)
    for t in range(2):
        m(dre, Sre + 4 * t, xim + 4 * t, False)
        m(dim, Sim + 4 * t, xre + 4 * t, False)
    if fill is not None: shadow(a, fill, tail)

def wave_sum(a, vals, tmps):
    for mod in ("quad_perm:[1,0,3,2]", "quad_perm:[2,3,0,1]", "row_half_mirror", "row_mirror"):
        for v in vals:
            a(f"v_add_f32_dpp v{v}, v{v}, v{v} {mod} row_mask:0xf bank_mask:0xf")
    for sw in ("v_permlane16_swap_b32", "v_permlane32_swap_b32"):
        for v, t in zip(vals, tmps): a(f"v_mov_b32 v{t}, v{v}")
        for v, t in zip(vals, tmps): a(f"{sw} v{v}, v{t}")
        for v, t in zip(vals, tmps): a(f"v_add_f32 v{v}, v{v}, v{t}")

def round_bf16(a, v):
    a(f"v_cvt_pk_bf16_f32 v{v}, v{v}, v{v}")
    a(f"v_and_b32 v{v}, 0xffff0000, v{v}")

def layernorm2(a, rows, st, scale, mid=None):
    for i in range(8):
        for k, b in enumerate(rows):
            s, q = st + 4 * k, st + 4 * k + 2
            if i == 0: a(f"v_pk_mul_f32 {R(q,2)}, {R(b,2)}, {R(b,2)}")
            else:
                a(f"v_pk_add_f32 {R(s,2)}, {R(b if i == 1 else s,2)}, {R(b+2*i,2)}")
                a(f"v_pk_fma_f32 {R(q,2)}, {R(b+2*i,2)}, {R(b+2*i,2)}, {R(q,2)}")
    vals = [st, st + 2, st + 4, st + 6]
    for v in vals: a(f"v_add_f32 v{v}, v{v}, v{v+1}")
    if mid: mid()
    wave_sum(a, vals, [v + 1 for v in vals])
    K = range(2)
    for k in K: a(f"v_mul_f32 v{st+4*k}, {fl(1/1024)}, v{st+4*k}")
    for k in K: a(f"v_mul_f32 v{st+4*k+1}, v{st+4*k}, v{st+4*k}")
    for k in K: a(f"v_mul_f32 v{st+4*k+2}, {fl(1/1024)}, v{st+4*k+2}")
    for k in K: a(f"v_sub_f32 v{st+4*k+2}, v{st+4*k+2}, v{st+4*k+1}")
    for k in K: a(f"v_max_f32 v{st+4*k+2}, 0, v{st+4*k+2}")
    for k in K: a(f"v_cvt_pk_bf16_f32 v{st+4*k}, v{st+4*k}, v{st+4*k+2}")
    for k in K: a(f"v_and_b32 v{st+4*k+2}, 0xffff0000, v{st+4*k}")
    for k in K: a(f"v_add_f32 v{st+4*k+2}, {fl(1e-5)}, v{st+4*k+2}")
    for k in K: a(f"v_cvt_pk_bf16_f32 v{st+4*k+2}, v{st+4*k+2}, v{st+4*k+2}")
    for k in K: a(f"v_and_b32 v{st+4*k+2}, 0xffff0000, v{st+4*k+2}")
    for k in K: a(f"v_sqrt_f32 v{st+4*k+2}, v{st+4*k+2}")
    for k in K: a(f"v_lshlrev_b32 v{st+4*k}, 16, v{st+4*k}")
    for k in K: a(f"v_cvt_pk_bf16_f32 v{st+4*k+2}, v{st+4*k+2}, v{st+4*k+2}")
    for k in K: a(f"v_and_b32 v{st+4*k+2}, 0xffff0000, v{st+4*k+2}")
    for k in K: a(f"v_rcp_f32 v{st+8+2*k}, v{st+4*k+2}")
    if scale != 1:
        for k in K: a(f"v_mul_f32 v{st+8+2*k}, {fl(scale)}, v{st+8+2*k}")
    for k in K: a(f"v_mul_f32 v{st+4*k}, -v{st+4*k}, v{st+8+2*k}")

def weight_prefetch_load(a, pf, s0):
    if pf: a(f"s_load_dwordx4 s[{s0+4}:{s0+7}], s[0:1], 32")

def weight_prefetch_setup(a, pf, wave, s0, vt):
    if not pf: return
    row0, r = pf
    a(f"""v_mul_u32_u24 v{vt}, 0x2493, v0
    v_lshrrev_b32 v{vt}, 16, v{vt}
    v_mad_i32_i24 v{vt+1}, v{vt}, -7, v0
    v_min_u32 v{vt}, {r-1}, v{vt}
    v_mul_u32_u24 v{vt}, 7168, v{vt}
    v_lshl_add_u32 v{vt}, v{vt+1}, 7, v{vt}
    s_lshr_b32 s{s0+8}, s2, 3
    s_and_b32 s{s0+8}, s{s0+8}, 31
    s_lshl_b32 s{s0+8}, s{s0+8}, 2
    s_add_u32 s{s0+8}, s{s0+8}, {wave}
    s_mul_i32 s{s0+8}, s{s0+8}, {7168*r}
    s_and_b32 s{s0+9}, s2, 7
    s_mul_i32 s{s0+9}, s{s0+9}, 896
    s_add_u32 s{s0+8}, s{s0+8}, s{s0+9}
    s_add_u32 s{s0+8}, s{s0+8}, {7168*row0}
    s_mov_b32 s{s0}, s{s0+4}
    s_and_b32 s{s0+1}, s{s0+5}, 0xffff
    s_mov_b32 s{s0+2}, 7340032
    s_mov_b32 s{s0+3}, 0x20000
    s_mov_b32 s{s0+4}, s{s0+6}
    s_and_b32 s{s0+5}, s{s0+7}, 0xffff
    s_mov_b32 s{s0+6}, 7340032
    s_mov_b32 s{s0+7}, 0x20000""")

def weight_prefetch_issue(a, pf, s0, vt, vd=None):
    if not pf: return 0
    vd = vt + 2 if vd is None else vd
    a(f"buffer_load_dword v{vd}, v{vt}, s[{s0}:{s0+3}], s{s0+8} offen")
    a(f"buffer_load_dword v{vd}, v{vt}, s[{s0+4}:{s0+7}], s{s0+8} offen")
    return 2
```

```python
from asmlib import *

NAME = "gemm1_kernel"
STAGE = 28672
PART = 14336
LDS = 4 * STAGE
WD = 6

def areg(f, j): return 32 + 4 * (f * 4 + j)
def acc(f, j):
    b = areg(f, j); return f"v[{b}:{b+3}]"
def aset(u, j):
    b = (u % 8) * 16 + 4 * j
    return f"a[{b}:{b+3}]"
def wreg(n, x=None):
    b = 128 + 4 * (n % 7)
    return f"a[{b}:{b+3}]" if x is None else f"a[{b+2*x}:{b+2*x+1}]"

SAVE = 200

def tile_ids(a, nb, t):
    a(f"""s_and_b32 s{nb}, s2, 7
    s_lshl_b32 s{nb}, s{nb}, 2
    s_bfe_u32 s{t}, s2, 0x20003
    s_add_u32 s{nb}, s{nb}, s{t}""")

def dma_voffsets(a, nb, s0, vt, vo):
    a(f"""s_and_b32 s{s0}, s13, 1
    s_mul_i32 s{s0}, s{s0}, 448
    s_and_b32 s{s0+1}, s{nb}, 1
    s_lshl_b32 s{s0+1}, s{s0+1}, 1
    s_mov_b32 s{s0+2}, 0x4925
    s_movk_i32 s{s0+3}, 7168
    v_add_u32 v{vt}, s{s0}, v0""")
    for i in range(7):
        if i: a(f"v_add_u32 v{vt}, 64, v{vt}")
        a(f"""v_mul_u32_u24 v{vt+1}, s{s0+2}, v{vt}
        v_lshrrev_b32 v{vt+1}, 18, v{vt+1}
        v_mad_i32_i24 v{vt+2}, v{vt+1}, -14, v{vt}
        v_add_u32 v{vt+2}, s{s0+1}, v{vt+2}
        v_subrev_u32 v{vt+3}, 14, v{vt+2}
        v_min_u32 v{vt+2}, v{vt+2}, v{vt+3}""")
        if i & 3: a(f"v_subrev_u32 v{vt+2}, {64*(i&3)}, v{vt+2}")
        a(f"""v_lshlrev_b32 v{vt+2}, 4, v{vt+2}
        v_mad_u32_u24 v{vo+i}, v{vt+1}, s{s0+3}, v{vt+2}""")

def early_top(a):
    a("s_load_dwordx2 s[66:67], s[0:1], 32\ns_load_dwordx2 s[68:69], s[0:1], 40\ns_load_dwordx2 s[72:73], s[0:1], 48\ns_load_dwordx2 s[94:95], s[0:1], 56")

def early_dma(a, vt, s0=40, split=False):
    vo = vt + 4
    tile_ids(a, s0 + 6, s0 + 7)
    dma_voffsets(a, s0 + 6, s0, vt, vo)
    a(f"""s_cmp_lt_u32 s13, 2
    s_cselect_b32 s{s0}, s66, s68
    s_cselect_b32 s{s0+1}, s67, s69
    s_and_b32 s{s0+1}, s{s0+1}, 0xffff
    s_mov_b32 s{s0+2}, 7340032
    s_mov_b32 s{s0+3}, 0x20000
    s_mul_i32 s{s0+4}, s{s0+6}, 224
    s_mul_i32 s{s0+5}, s13, 7168""")
    for i in range(7): a(f"v_accvgpr_write_b32 a{SAVE+i}, v{vo+i}")
    ops = []
    for s in range(2):
        for i in range(7):
            o = f"buffer_load_dwordx4 v{vo+i}, s[{s0}:{s0+3}], s{s0+4} offen offset:{1024*(i&3)} lds"
            if i in (0, 4): o = f"s_add_u32 m0, s{s0+5}, {s * STAGE + 1024 * i}\n" + o
            if s == 0 and i == 6: o += f"\ns_add_u32 s{s0+4}, s{s0+4}, {64*7168}"
            ops.append(o)
    if split: return ops
    for o in ops: a(o)
    return []

def gen(diag=False, sf="sc1", sf_left="", ahead=4, wd_it=2, spread=True, wd_st=(0,), wd_match=False, iter_marks=False, tail_marks=None, pk=False, ntail=2, l2rows=0, l2at=13, wide=False, a=None, af='', fm=(1, 2), pl='sc1', st='sc1', sl0=0, sl1=0, pack=False, wgflag=False, gorder=(0, 1, 2, 3), chain=None, nxt=None, l2late=True, l2loop=0, wdspread=False, pre=False, hearly=False, young=0, nearly=2, stage=False, cnt=False, prog=False, quick=0, zig=False, chn=False, adist=4, tight=False, slots=None, c4=False, wd4=8):
    chn = chn or c4
    zig = zig or chn
    CL = 4 if c4 else 2
    ring = 14 if c4 else 7
    def wreg(n, x=None):
        b = 128 + 4 * (n % ring)
        return f"a[{b}:{b+3}]" if x is None else f"a[{b+2*x}:{b+2*x+1}]"
    WD = wd4 if c4 else 5 if zig else globals()['WD']
    fused = a is not None
    if not fused:
        a = Asm()
        kernel_head(a, NAME)
        diag_begin(a, diag)
        a("""s_cmp_ge_u32 s2, 256
        s_cbranch_scc1 L_g1_end
        s_load_dwordx4 s[4:7], s[0:1], 32
        s_load_dwordx2 s[8:9], s[0:1], 72
        s_load_dwordx2 s[18:19], s[0:1], 48""")
        code_prefetch(a, NAME, "L_g1_end", 30)
        a("""v_lshrrev_b32 v1, 6, v0
        v_and_b32 v0, 63, v0
        s_nop 0
        v_readfirstlane_b32 s13, v1""")
    else:
        a("; ---- gemm 1")
        if pack:
            a(f"""s_lshr_b32 s52, s12, 3
            s_mul_i32 s52, s52, {8*BETA_STRIDE}
            s_and_b32 s53, s12, 7
            s_lshl_b32 s53, s53, 4
            s_add_u32 s52, s52, s53""")
        else: a(f"s_mul_i32 s52, s12, {BETA_STRIDE}")
        a(f"""s_lshl_b32 s53, s13, 2
        s_add_u32 s52, s52, s53
        s_mov_b32 s54, s16
        s_mov_b32 s55, s17
        s_mov_b64 s[56:57], s[28:29]
        s_mov_b32 s58, 4194304
        s_mov_b32 s59, 0x20000
        s_mov_b64 s[8:9], s[10:11]
        s_mov_b64 s[4:5], s[66:67]
        s_mov_b64 s[6:7], s[68:69]
        s_mov_b64 s[18:19], s[72:73]""")
    tile_ids(a, 10, 11)
    a("s_lshr_b32 s12, s2, 5")
    if fused:
        for i in range(7): a(f"v_accvgpr_read_b32 v{8+i}, a{SAVE+i}")
    else:
        dma_voffsets(a, 10, 14, 2, 8)
    a(f"""v_lshlrev_b32 v16, 4, v0
    s_mul_i32 s28, s10, 224
    s_mov_b32 s29, 0
    s_mul_i32 s30, s13, 7168
    s_lshl_b32 s11, s12, 2
    s_add_u32 s11, s11, s13
    s_lshl_b32 s14, s11, 17
    s_mov_b32 s22, 7340032
    s_mov_b32 s23, 0x20000
    s_mov_b32 s26, 131072
    s_mov_b32 s27, 0x20000""")
    if fused and not young: a(f"s_add_u32 s28, s28, {nearly*64*7168}")
    a(f"s_add_u32 s14, s14, {WS_LN2}")
    for j in range(1, 4):
        a(f"v_add_u32 v{16+j}, {32768*j}, v16")
    a("""s_cmp_lt_u32 s13, 2
    s_waitcnt lgkmcnt(0)
    s_cselect_b32 s20, s4, s6
    s_cselect_b32 s21, s5, s7
    s_and_b32 s21, s21, 0xffff
    s_add_u32 s24, s8, s14
    s_addc_u32 s25, s9, 0
    s_and_b32 s25, s25, 0xffff""")

    vm = VM()
    vm.issue("code")
    def dma_ops(s):
        ops = []
        for i in range(7):
            pre = [f"s_add_u32 m0, s30, {(s % 4) * STAGE + 1024 * i}"] if i in (0, 4) else []
            ins = f"buffer_load_dwordx4 v{8+i}, s[20:23], s28 offen offset:{1024*(i&3)} lds"
            post = [f"s_add_u32 s28, s28, {64*7168}"] if i == 6 else []
            ops.append((pre, ins, post, ("D", s)))
        return ops
    def sreg(s, i):
        b = 180 + 28 * (s % 2) + 4 * i; return f"a[{b}:{b+3}]"
    def ld_op(s, i):
        post = [f"s_add_u32 s28, s28, {64*7168}"] if i == 6 else []
        return ([], f"buffer_load_dwordx4 {sreg(s, i)}, v{8+i}, s[20:23], s28 offen offset:{1024*(i&3)}", post, ("L", s, i))
    def wr_op(s, i):
        return f"ds_write_b128 {'v15' if s % 4 < 2 else 'v23'}, {sreg(s, i)} offset:{(s % 2) * STAGE + 1024 * i}"
    def act_ops(u):
        ops = []
        for j in range(4):
            ins = f"buffer_load_dwordx4 {aset(u, j)}, v{16+j}, s[24:27], s29 offen offset:{1024*(u&3)} {af}"
            post = ["s_add_u32 s29, s29, 4096"] if (j == 3 and (u & 3) == 3) else []
            ops.append(([], ins, post, ("A", u)))
        return ops

    u0 = 32 - 2 * ntail
    def span(ua, ub, ffs):
        if chn: return [(u + k, ff) for u in range(ua, ub, CL) for ff in ffs for k in range(CL)]
        return [(u, ff) for u in range(ua, ub) for ff in ffs]
    seq = span(0, u0, range(14))
    groups = [(range(0, 4), range(4, 8), range(8, 12), range(12, 14))[p] for p in gorder]
    gstart = []
    for g in groups:
        gstart.append(len(seq))
        seq += span(u0, 32, g)
    def wread(n):
        if n >= len(seq): return []
        u, ff = seq[n]
        s, ks = divmod(u, 2)
        t, part = divmod(ff, 2)
        base = "v20" if (s % 4) < 2 else "v21"
        return [f"ds_read_b64_tr_b16 {wreg(n, x)}, {base} offset:{(s % 2) * STAGE + part * PART + (32 * ks + 16 * x) * 224 + 32 * t}" for x in range(2)]

    extra = [f"v_mov_b32 v{r}, 0" for r in range(4, 8)]
    extra += f"""v_lshrrev_b32 v2, 2, v0
    v_mul_u32_u24 v2, 224, v2
    v_and_b32 v3, 3, v0
    v_lshl_add_u32 v20, v3, 3, v2
    v_add_u32 v21, {2*STAGE}, v20""".split("\n")
    extra += [f"v_mfma_f32_32x32x16_bf16 v[{r}:{r+15}], v[4:7], v[4:7], 0" for r in range(32, 256, 16)]
    if stage: extra += ["v_add_u32 v15, s30, v16", f"v_add_u32 v23, {2*STAGE}, v15"]
    extra += f"""s_mov_b32 s32, s18
    s_and_b32 s33, s19, 0xffff
    s_mov_b32 s35, 0x20000
    s_add_u32 s36, s8, {WS_XCH}
    s_addc_u32 s37, s9, 0
    s_and_b32 s37, s37, 0xffff
    s_mov_b32 s38, {256*16384}
    s_mov_b32 s39, 0x20000
    s_lshl_b32 s40, s2, 2
    s_add_u32 s40, s40, s13
    s_mul_i32 s41, s40, 7168
    s_lshl_b32 s40, s40, 12
    WDADDR
    v_mov_b32 v24, -1
    v_mov_b32 v25, -1
    v_mov_b32 v26, -1
    v_mov_b32 v27, -1
    v_min_u32 v28, 6, v0
    v_lshlrev_b32 v28, 7, v28
    s_lshr_b32 s42, s2, 3
    s_lshl_b32 s42, s42, 1
    s_and_b32 s43, s13, 1
    s_add_u32 s42, s42, s43
    s_add_u32 s42, s42, {64*ahead}
    s_mul_i32 s42, s42, 7168
    s_and_b32 s43, s2, 7
    s_mul_i32 s43, s43, 896
    s_add_u32 s51, s42, s43
    s_mul_i32 s14, s11, {4*112*1024}
    s_add_u32 s14, s14, {WS_HH}
    s_add_u32 s44, s8, s14
    s_addc_u32 s45, s9, 0
    s_and_b32 s45, s45, 0xffff
    s_mov_b32 s46, {4*112*1024}
    s_mov_b32 s47, 0x20000
    s_and_b32 s15, s10, 1
    s_mul_i32 s14, s10, 7
    s_add_u32 s48, s14, s15
    s_lshl_b32 s48, s48, 9
    s_add_u32 s16, s48, 3072
    s_sub_u32 s17, s48, 1016
    s_cmp_eq_u32 s15, 0
    s_cselect_b32 s49, s16, s17
    s_mov_b32 s31, 0""".split("\n")
    if prog:
        assert gorder == (3, 0, 1, 2)
        k = [e.strip() for e in extra].index("s_and_b32 s15, s10, 1")
        extra[k:k+8] = """s_and_b32 s15, s10, 1
    s_lshr_b32 s14, s10, 4
    s_mul_i32 s14, s14, 56
    s_bfe_u32 s16, s10, 0x30001
    s_mul_i32 s17, s16, 5
    s_add_u32 s17, s17, s14
    s_add_u32 s49, s17, 2
    s_lshl_b32 s49, s49, 7
    s_add_u32 s49, s49, s15
    s_lshl_b32 s49, s49, 3
    s_mul_i32 s48, s15, 3
    s_add_u32 s48, s48, s17
    s_lshl_b32 s48, s48, 10
    s_lshl_b32 s16, s16, 1
    s_add_u32 s16, s16, s14
    s_add_u32 s16, s16, s15
    s_add_u32 s16, s16, 38
    s_lshl_b32 s50, s16, 10""".split("\n")
    k = [e.strip() for e in extra].index("WDADDR")
    if wd_match:
        extra[k:k+1] = f"""v_min_u32 v22, 55, v0
    v_lshrrev_b32 v23, 3, v22
    v_and_b32 v22, 7, v22
    v_lshlrev_b32 v22, 7, v22
    v_lshl_add_u32 v22, v23, 11, v22
    s_lshr_b32 s41, s2, 3
    s_lshl_b32 s41, s41, 2
    s_add_u32 s41, s41, s13
    s_mul_i32 s41, s41, {7*2048}
    s_bfe_u32 s42, s2, 0x10002
    s_mul_i32 s42, s42, {1792*2048}
    s_add_u32 s41, s41, s42
    s_and_b32 s42, s2, 1
    s_lshl_b32 s42, s42, 10
    s_add_u32 s41, s41, s42
    s_add_u32 s50, s41, {896*2048}""".split("\n")
    else:
        extra[k:k+1] = ["v_lshlrev_b32 v22, 7, v0", f"v_min_u32 v22, {384 if wdspread else 7040}, v22", "s_mov_b32 s34, 7340032"]
    if l2loop:
        extra += f"""v_min_u32 v15, {8*l2loop-1}, v0
    v_lshrrev_b32 v2, 3, v15
    v_and_b32 v15, 7, v15
    v_lshlrev_b32 v15, 7, v15
    v_lshl_add_u32 v15, v2, 11, v15
    s_lshr_b32 s65, s2, 3
    s_lshl_b32 s65, s65, 2
    s_add_u32 s65, s65, s13
    s_mul_i32 s65, s65, {l2loop*2048}
    s_bfe_u32 s42, s2, 0x10002
    s_mul_i32 s42, s42, {1792*2048}
    s_add_u32 s65, s65, s42
    s_and_b32 s42, s2, 1
    s_lshl_b32 s42, s42, 10
    s_add_u32 s65, s65, s42""".split("\n")
    if fused:
        if young:
            for pre_, ins, post, tag in dma_ops(0) + dma_ops(1): a("\n".join(pre_ + [ins] + post))
        for e in extra: a(e)
        a(f"""s_add_u32 s60, s8, {WS_FLAG}
        s_addc_u32 s61, s9, 0
        s_and_b32 s61, s61, 0xffff
        s_mov_b32 s62, {256*BETA_STRIDE}
        s_mov_b32 s63, 0x20000
        v_bfe_u32 v2, v0, 2, 3
        v_mul_u32_u24 v2, {16 if pack else BETA_STRIDE}, v2
        v_and_b32 v3, 3, v0
        v_lshl_add_u32 v2, v3, 2, v2
        s_mul_i32 s53, s11, {8*BETA_STRIDE}
        v_mov_b32 v1, 1
        v_mov_b32 v30, 0
        s_mov_b32 s64, 0
        s_waitcnt vmcnt({young})""")
        if wgflag:
            a(f"""v_and_b32 v2, 7, v0
            v_mul_u32_u24 v2, {BETA_STRIDE}, v2
            s_barrier
            s_cmp_lg_u32 s13, 0
            s_cbranch_scc1 L_g1_noflag""")
        a(f"""s_mov_b64 exec, 1
        buffer_store_dword v1, v30, s[60:63], s52 offen {st}
        s_mov_b64 exec, -1
        L_g1_noflag:""")
        diag_mark(a, diag and fm[0], fm[0])
        import fft3
        hst = [f"buffer_store_dwordx4 a[{fft3.HA+4*k}:{fft3.HA+4*k+3}], v16, s[56:59], s{54+(k>>1)} offen offset:{1024*(k&1)} sc1" for k in range(4)]
        assert not (pre and young)
        if pre:
            for n in range(WD):
                for r in wread(n): a(r)
        if hearly:
            for x in hst: a(x)
        if sl0: a(f"s_sleep {sl0}")
        a("L_g1_poll:")
        if sl1: a(f"s_sleep {sl1}")
        a(f"""buffer_load_dword v3, v2, s[60:63], s53 offen {pl}
        s_add_u32 s64, s64, 1
        s_waitcnt vmcnt(0)
        v_cmp_ne_u32 vcc, 1, v3
        s_cmp_lt_u32 s64, 0x40000
        s_cselect_b64 s[74:75], vcc, 0
        s_cmp_lg_u64 s[74:75], 0
        s_cbranch_scc1 L_g1_poll""")
        for s_ in range(nearly): vm.issue(("D", s_))
        for u in range(adist):
            for pre, ins, post, tag in act_ops(u):
                a(ins); vm.issue(tag)
                for p in post: a(p)
        for s_ in range(nearly, 2):
            for pre_, ins, post, tag in dma_ops(s_):
                a("\n".join(pre_ + [ins] + post)); vm.issue(tag)
        for s_ in ((2, 3) if stage else ()):
            for i in range(7):
                pre_, ins, post, tag = ld_op(s_, i)
                a("\n".join([ins] + post)); vm.issue(tag)
        for x in ([] if hearly else hst):
            a(x); vm.issue("h")
    else:
        order = dma_ops(0) + act_ops(0) + act_ops(1) + dma_ops(1)
        for u in range(2, adist): order += act_ops(u)
        if stage:
            L = lambda s_: [ld_op(s_, i) for i in range(7)]
            order = dma_ops(0) + act_ops(0) + dma_ops(1) + L(2) + act_ops(1) + L(3) + act_ops(2) + act_ops(3)
        for n, (pre, ins, post, tag) in enumerate(order):
            for p in pre: a(p)
            a(ins); vm.issue(tag)
            for p in post: a(p)
            if n >= 10:
                k = 0
                while extra and (k < 4 or extra[0].strip().startswith(("s_addc", "s_cselect"))):
                    a(extra.pop(0)); k += 1
        for e in extra: a(e)
        a(f"s_waitcnt vmcnt({vm.need([('D', 0)])})")
    if not (fused and wgflag) or young: a("s_barrier")
    for n in range(0 if fused and pre else WD):
        for r in wread(n): a(r)

    def epi(p):
        out = []
        for j in range(4):
            ts = [2 * p, 2 * p + 1] if p < 3 else [6]
            o = areg(2 * ts[0] + 1, j)
            for t in ts:
                g, u_ = areg(2 * t, j), areg(2 * t + 1, j)
                if pk or p == gorder[3]:
                    out.append(f"v_pk_mul_f32 v[{g}:{g+1}], v[{g}:{g+1}], v[{u_}:{u_+1}]")
                    out.append(f"v_pk_mul_f32 v[{g+2}:{g+3}], v[{g+2}:{g+3}], v[{u_+2}:{u_+3}]")
                else:
                    out += [f"v_mul_f32 v{g+r}, v{g+r}, v{u_+r}" for r in range(4)]
            for n, t in enumerate(ts):
                g = areg(2 * t, j)
                out.append(f"v_cvt_pk_bf16_f32 v{o+2*n}, v{g}, v{g+1}")
                out.append(f"v_cvt_pk_bf16_f32 v{o+2*n+1}, v{g+2}, v{g+3}")
            vo = "v16" if j == 0 else f"v{4+j}"
            if p < 3: out.append(f"buffer_store_dwordx4 v[{o}:{o+3}], {vo}, s[44:47], s{50 if prog and p == 2 else 48} offen offset:{1024*p} {sf}")
            else: out.append(f"buffer_store_dwordx2 v[{o}:{o+1}], {vo}, s[44:47], s49 offen {sf_left}")
        return out

    sched, wsched = {}, {}
    def put(n, op): sched.setdefault(n, []).append(op)
    touch = ([], "buffer_load_dword v29, v28, s[20:23], s51 offen", [f"s_add_u32 s51, s51, {64*7168}"] + ([f"s_min_u32 s51, s51, {7340032 - 896}"] if ahead > 4 or c4 else []), "touch")
    fillx = ([], "buffer_store_dwordx4 v[24:27], v16, s[36:39], s40 offen sc1", ["s_add_u32 s40, s40, 1024"], "fill")
    wdtouch = ([], "buffer_load_dword v29, v22, s[32:35], s41 offen", ["s_add_u32 s41, s41, 512"], "pf")
    if c4:
        for S in range(7):
            b = 56 * S
            for i, op in enumerate(dma_ops(2 * S + 2) + dma_ops(2 * S + 3)): put(b + 2 * i, op)
            for k in range(16): put(b + 1 + 2 * k, act_ops(4 * S + 4 + k // 4)[k % 4])
            if S < 6:
                put(b + 34, touch); put(b + 44, touch)
                put(b + 36, wdtouch); put(b + 46, wdtouch)
            if S % 2 == 0: put(b + 40, fillx)
    for s in range(0 if c4 else 12):
        b = 28 * s
        if stage:
            for i in range(7):
                wsched[b + 2 * i] = (s + 2, i); put(b + 2 * i + 1, ld_op(s + 4, i))
        else:
            for i, op in enumerate(dma_ops(s + 2)): put(b + (slots[0][i] if slots else 2 * i if spread else i), op)
        for k in range(8):
            op = act_ops(2 * s + adist + k // 4)[k % 4]
            put(b + (slots[1][k] if slots else 13 + 2 * k if spread else 7 + k % 4 + 14 * (k // 4)), op)
        put(b + (slots[2] if slots else 14 if spread else 12), touch)
        if wdspread: put(b + (slots[3] if slots else 16), wdtouch)
        for q, st in enumerate(() if wdspread else wd_st if wd_match else wd_st[:1]):
            if s % 4 == st:
                put(b + 26 - 2 * q, ([f"s_cmp_eq_u32 s31, {wd_it}", "s_cselect_b32 s34, 7340032, 0"], f"buffer_load_dword v29, v22, s[32:35], s{50 if q else 41} offen", [], "pf"))
        if s % 4 == 1: put(b + 26, fillx)
        if l2loop:
            put(b + 16, (["s_cmp_eq_u32 s31, 2", "s_cselect_b32 s34, 7340032, 0"], "buffer_load_dword v29, v15, s[32:35], s65 offen",
                         [f"s_cselect_b32 s42, {128*l2loop*2048}, 0", "s_add_u32 s65, s65, s42"], "l2"))
    b = 28 * 12
    if stage:
        for i in range(7):
            wsched[b + 2 * i] = (14, i); wsched[b + 28 + 2 * i] = (15, i)
        for k in range(16): put(b + 1 + 2 * k, act_ops(28 + k // 4)[k % 4])
        put(b + 38, fillx)
    elif c4: pass
    elif ntail == 2:
        for i, op in enumerate(dma_ops(14)): put(b + 2 * i, op)
        assert adist in (4, 6)
        for k in range(8): put(b + 1 + 2 * k + (k > 6), act_ops(24 + adist + k // 4)[k % 4])
        for i, op in enumerate(dma_ops(15)): put(b + 24 + 2 * i if zig else b + 22 + 2 * i, op)
        for k in range(8 if adist == 4 else 0): put(b + (18 + 2 * k if k < 2 else 19 + 2 * k), act_ops(30 + k // 4)[k % 4])
        put(b + 39, fillx)
    else:
        for i, op in enumerate(dma_ops(14)): put(b + 2 * i, op)
        for k in range(16): put(b + (1 + 2 * k if k < 7 else 7 + k), act_ops(28 + k // 4)[k % 4])
        for i, op in enumerate(dma_ops(15)): put(b + 23 + i, op)
        put(b + 31, fillx)
    if wdspread and not c4:
        put(b + 17, wdtouch); put(b + 36, wdtouch)
    if l2loop:
        for n in range(1792 // (128 * l2loop) - 4):
            put(b + 20 + 14 * n, (["s_mov_b32 s34, 7340032"], "buffer_load_dword v29, v15, s[32:35], s65 offen", [f"s_add_u32 s65, s65, {128*l2loop*2048}"], "l2"))
    late = {b + 27: [f"v_add_u32 v{4+j}, {112*1024*j}, v16" for j in range(1, 4)]}
    if l2rows:
        late[b + 40] = f"""v_min_u32 v22, {8*l2rows-1}, v0
    v_lshrrev_b32 v23, 3, v22
    v_and_b32 v22, 7, v22
    v_lshlrev_b32 v22, 7, v22""".split("\n")
        late[b + 41] = f"""v_lshl_add_u32 v22, v23, 11, v22
    s_lshr_b32 s41, s2, 3
    s_lshl_b32 s41, s41, 2
    s_add_u32 s41, s41, s13""".split("\n")
        late[b + 42] = f"""s_mul_i32 s41, s41, {l2rows*2048}
    s_bfe_u32 s42, s2, 0x10002
    s_mul_i32 s42, s42, {1792*2048}
    s_add_u32 s41, s41, s42""".split("\n")
        late[b + 43] = f"""s_and_b32 s42, s2, 1
    s_lshl_b32 s42, s42, 10
    s_add_u32 s41, s41, s42
    s_mov_b32 s34, 7340032""".split("\n")
        if nxt: late[b + 43].append(f"s_add_u32 s41, s41, {192*2048}")
        if wide:
            late[b + 40] = [f"v_min_u32 v22, {8*l2rows-1}, v0", "v_lshlrev_b32 v22, 7, v22"]
            late[b + 41] = late[b + 41][1:]
            late[b + 42][0] = f"s_mul_i32 s41, s41, {l2rows*1024}"
            late[b + 43] = ["s_mov_b32 s34, 7340032"]
        if not (nxt and l2late): put(gstart[0] + min(l2at, 2 * ntail * len(groups[0]) - len(groups[0]) + 1), ([], "buffer_load_dword v29, v22, s[32:35], s41 offen", [], "l2"))

    if nxt:
        setup, ops = nxt
        if not l2rows: late.setdefault(b + 43, []).append('s_mov_b32 s34, 7340032')
        for k in range(0, len(setup), 3): late.setdefault(b + 44 + k // 3, []).extend(setup[k:k+3])
        assert b + 44 + len(setup) // 3 < gstart[0] + 8
    if prog:
        for k, op in enumerate(nxt[1]): put(gstart[3] + 9 + k // 2, op)
    if c4:
        for pre_, ins, post, tag in (touch, wdtouch, touch, wdtouch):
            a("\n".join([ins] + post)); vm.issue(tag)
    lg = VM()
    for n in range(WD): lg.issue(("W", n)); lg.issue(("W", n))
    seen_a, seen_d = set(), ({0, 1} if c4 else {0})
    pend_epi = []
    def job(n, out):
        u, ff = seq[n]
        head, fill = [], [[], [], [], []]
        if chn:
            if n % CL == 0 and u not in seen_a:
                seen_a.add(u); head.append(("vm", vm.need([("A", u + CL - 1)])))
        elif u not in seen_a:
            seen_a.add(u); head.append(("vm", vm.need([("A", u)])))
        if not zig: head.append(("lg", lg.need([("W", n)])))
        elif n % CL == 0: head.append(("lg", min(15, lg.need([("W", n + CL - 1)]))))
        if c4 and n % 56 == 0 and n < gstart[0]: head.append(("t", "s_barrier"))
        if n + WD < len(seq) and seq[n + WD][0] // 2 not in seen_d:
            sd = seq[n + WD][0] // 2
            seen_d.add(sd)
            if c4:
                sd += 1; seen_d.add(sd)
            if not (stage and sd >= 2): head.append(("vm", vm.need([("D", sd)])))
            elif n < 336: head.append(("vm", 63))
            head.append(("t", "s_barrier"))
        rd = wread(n + WD)
        if rd:
            fill[0].append(rd[0]); fill[1].append(rd[1])
            lg.issue(("W", n + WD)); lg.issue(("W", n + WD))
        wait_w = None
        if n in wsched:
            wait_w = vm.need([("L",) + wsched[n]])
            fill[3].append(wr_op(*wsched[n])); lg.issue("wr")
        for pre, ins, post, tag in sched.get(n, []):
            fill[1].extend(pre)
            fill[2].append(ins); vm.issue(tag)
            fill[2].extend(post)
        fill[3].extend(late.get(n, []))
        for gi in range(1, 4):
            if n == gstart[gi] + 1: pend_epi.extend(epi(gorder[gi - 1]))
        cur = max(gi for gi in range(4) if n >= gstart[gi]) if n >= gstart[0] else 0
        rate = -(-(36 if pk else 52) // (2 * ntail * len(groups[cur]) - 2))
        if prog and n == gstart[3] + 9: assert not pend_epi
        if quick and cur == 3: rate = quick
        for pos in sorted((([2, 3, 1, 0] * 3)[:rate])):
            if pend_epi: fill[pos].append(pend_epi.pop(0))
        if n < 336 and n % 112 == 111:
            fill[2].append("s_add_u32 s31, s31, 1")
            fill[3].append("s_cmp_lt_u32 s31, 3")
        if tight:
            fill = [[], fill[0][:1] + fill[0][1:] + [x for x in fill[1] if not x.startswith("ds_read")], [], [x for x in fill[1] if x.startswith("ds_read")] + fill[2] + fill[3]]
        out.extend(head)
        for j in range(4):
            m_, jj = n, j
            if zig:
                k = 4 * (n % 2) + j
                m_, jj = n - n % 2 + (0, 1, 1, 0)[k % 4], k // 2
                if c4:
                    jj = n % 4
                    m_ = n - jj + (j if jj % 2 == 0 else 3 - j)
                if (n // CL) % 2: jj = 3 - jj
            out.append(("t", f"v_mfma_f32_16x16x32_bf16 {acc(seq[m_][1], jj)}, {wreg(m_)}, {aset(seq[m_][0], jj)}, {acc(seq[m_][1], jj)}"))
            if j == 1 and wait_w is not None and not tight: out.append(("vm", wait_w))
            for x in fill[j]: out.append(("t", x))
    iters = []
    for it in range(3):
        out = []
        for n in range(112 * it, 112 * it + 112): job(n, out)
        iters.append(out)
    if not tail_marks: diag_mark(a, diag and (fm[1] or not fused), fm[1] if fused else 0 if iter_marks else 1)
    if diag: a("s_waitcnt lgkmcnt(0)")
    if diag and cnt: a(f"s_mov_b32 s{DS+4*fm[1]+2}, s64\ns_mov_b32 s{DS+4*fm[1]+3}, 0")
    if iter_marks:
        for o in iters:
            o.insert(8, ("t", f"s_cmp_eq_u32 s31, {iter_marks}"))
            o.insert(9, ("t", "s_cbranch_scc0 L_g1_nomark"))
            o.insert(10, ("t", f"s_memrealtime s[{DS+4}:{DS+5}]"))
            o.insert(11, ("t", f"s_memtime s[{DS+6}:{DS+7}]"))
            o.insert(12, ("t", "L_g1_nomark:"))
    fold_loop(a, "L_g1_loop", iters)
    if iter_marks: diag_mark(a, diag, 2)
    out = []
    for n in range(336, len(seq)):
        if diag and tail_marks and n in tail_marks:
            k = tail_marks.index(n)
            out += [("t", f"s_memrealtime s[{DS+4*k}:{DS+4*k+1}]"), ("t", f"s_memtime s[{DS+4*k+2}:{DS+4*k+3}]")]
        job(n, out)
    for k, x in out: a(f"s_waitcnt vmcnt({x})" if k == "vm" else f"s_waitcnt lgkmcnt({x})" if k == "lg" else x)
    if not iter_marks and not tail_marks and not fused: diag_mark(a, diag, 2)
    if prog:
        assert not pend_epi and quick
        a(f"""s_and_b32 s54, s2, 7
        s_lshl_b32 s54, s54, 5
        s_lshr_b32 s55, s2, 3
        s_add_u32 s54, s54, s55
        s_mul_i32 s54, s54, {BETA_STRIDE}
        s_lshl_b32 s55, s13, 2
        s_add_u32 s54, s54, s55
        s_mov_b64 s[56:57], s[44:45]
        s_mov_b32 s58, {4*112*1024}
        s_mov_b32 s59, 0x20000
        s_mov_b32 s65, s50
        v_mov_b32 v27, v5
        s_waitcnt vmcnt({len(nxt[1])})
        s_mov_b64 exec, 1
        buffer_store_dword v1, v30, s[60:63], s54 offen offset:32 sc1
        s_mov_b64 exec, -1""")
        last = epi(gorder[3])
        for x in last:
            if not x.startswith("buffer_store"): a(x)
        held = [x.replace("s[44:47], s50", "s[40:43], s65").replace(", v16,", ", v12,").replace(", v5,", ", v27,") for x in last if x.startswith("buffer_store")]
        chain(a, 0, [x.replace("s[40:43]", "s[56:59]") for x in held])
        return
    for x in pend_epi + epi(gorder[3]): a(x)
    if chain:
        for pre, ins, post, tag in nxt[1]: a("\n".join(pre + [ins] + post))
        young = len(nxt[1])
        if l2rows and l2late:
            a("buffer_load_dword v29, v22, s[32:35], s41 offen"); young += 1
        chain(a, young)
        return
    diag_end(a, diag, 3, 8, 9)
    if fused: return
    a("L_g1_end:")
    a("s_endpgm")
    return a.text(), kernel_desc(NAME, 512, 256), f"kernel={NAME} grid=(256,1,1) block=(256,1,1) lds={LDS}"
```

```python
from asmlib import *

NAME = "gemm2_kernel"
STAGE = 16384
LDS = 8 * STAGE
WD = 6
ACC, WR, RX, HR = 64, 32, 128, 160

HALF0 = 0x18000

def ids(a, nblk, kh, mblk):
    a(f"""s_bfe_u32 s{mblk}, s2, 0x10001
    s_lshl_b32 s{mblk}, s{mblk}, 3
    s_bfe_u32 s{kh}, s2, 0x30003
    s_add_u32 s{mblk}, s{mblk}, s{kh}
    s_and_b32 s{nblk}, s2, 1
    s_lshl_b32 s{nblk}, s{nblk}, 2
    s_lshr_b32 s{kh}, s2, 6
    s_add_u32 s{nblk}, s{nblk}, s{kh}
    s_bfe_u32 s{kh}, s2, 0x10002""")

VOFF = """v_lshrrev_b32 v2, 4, v0
    v_lshlrev_b32 v3, 1, v2
    v_and_b32 v8, 15, v0
    v_xor_b32 v3, v3, v8
    v_lshlrev_b32 v2, 11, v2
    v_lshl_add_u32 v8, v3, 4, v2
    v_xor_b32 v9, 128, v8
    v_add_u32 v9, 7168, v9
    v_add_u32 v10, 14336, v8
    v_add_u32 v11, 14336, v9"""

def blk(n):
    return 7 * (n // 5) + (0, 1, 3, 4, 5)[n % 5] if n < 40 else 7 * ((n - 40) // 2) + (2, 6)[n % 2]

def early(prog=False):
    from fftlib import lines
    setup = [l.strip() for l in VOFF.split("\n")] + lines(lambda t: ids(t, 54, 55, 56))
    setup += f"""s_mul_i32 s52, s55, {1792*2048}
    s_lshl_b32 s54, s54, 8
    s_add_u32 s52, s52, s54
    s_lshl_b32 s54, s13, 15
    s_add_u32 s52, s52, s54
    s_lshl_b32 s53, s13, 12""".split("\n")
    if prog:
        assert blk(2) - blk(0) == blk(3) - blk(1) == 3 and blk(6) - blk(4) == blk(7) - blk(5) == 3
        setup += [f"s_mov_b32 s57, {(blk(5)-blk(3)) << 16}", "s_cmp_lt_u32 s13, 2", f"s_cselect_b32 s57, {(blk(4)-blk(2)) << 16}, s57"]
    ops = []
    for s in range(3):
        for i in range(4):
            pre = [f"s_add_u32 m0, s53, {HALF0 + ((s + 1) % 4) * STAGE}"] if i == 0 else []
            step = ("s57" if s == 1 else 3 << 16) if prog else 64 * 2048
            post = [f"s_add_u32 s52, s52, {step}"] if i == 3 else []
            ops.append((pre, f"buffer_load_dwordx4 v{8+i}, s[32:35], s52 offen offset:{1024*i} lds", post, "g2"))
    return setup, ops

def gen(diag=False, store_flags="", adist=5, bl=3, marks=0, wide=False, a=None, af='', sl0=16, sl1=2, fm=(0, 2), young=0, full=False, of='', pre=False, cnt=None, xat=0, prog=False, held=(), zig=False, tail2=False, srate=3, chn=False, lm=False):
    def acc(nt, j):
        b = ACC + 4 * (nt * 2 + j); return f"v[{b}:{b+3}]"
    def aset(u, j):
        b = (u % 8) * 8 + 4 * j; return f"a[{b}:{b+3}]"
    def wreg(gf, x=None):
        b = WR + 4 * (gf % 8)
        return f"v[{b}:{b+3}]" if x is None else f"v[{b+2*x}:{b+2*x+1}]"
    fused = a is not None
    slot = (lambda s: (s + 1) % 4) if fused else (lambda s: s % 4)
    if not fused:
        a = Asm()
        kernel_head(a, NAME)
        diag_begin(a, diag)
        a("""s_cmp_ge_u32 s2, 256
        s_cbranch_scc1 L_g2_end
        s_load_dwordx4 s[4:7], s[0:1], 48
        s_load_dwordx2 s[8:9], s[0:1], 72""")
        code_prefetch(a, NAME, "L_g2_end", 30)
        a("""v_lshrrev_b32 v1, 6, v0
        v_and_b32 v0, 63, v0
        s_nop 0
        v_readfirstlane_b32 s13, v1""")
    else:
        a("; ---- gemm 2")
        a("s_mov_b64 s[4:5], s[72:73]\ns_mov_b64 s[6:7], s[94:95]")
    ids(a, 10, 11, 12)
    if wide:
        a("""s_and_b32 s12, s2, 3
        s_lshl_b32 s12, s12, 2
        s_bfe_u32 s10, s2, 0x20003
        s_add_u32 s12, s12, s10
        s_lshr_b32 s10, s2, 5""")
    if not fused: a(VOFF)
    a("v_lshlrev_b32 v12, 4, v0")
    a(f"""v_add_u32 v13, {112*1024}, v12
    s_lshl_b32 s14, s12, 2
    s_add_u32 s14, s14, s13
    s_mul_i32 s15, s14, {2*112*1024}
    s_add_u32 s15, s15, {WS_HH}
    s_mul_i32 s29, s11, {56*1024}
    s_mul_i32 s28, s11, {1792*2048}
    s_lshl_b32 s16, s10, 8
    s_add_u32 s28, s28, s16
    s_lshl_b32 s16, s13, 15
    s_add_u32 s28, s28, s16
    s_lshl_b32 s30, s13, 12
    s_mov_b32 s22, 7340032
    s_mov_b32 s23, 0x20000
    s_mov_b32 s26, {2*112*1024}
    s_mov_b32 s27, 0x20000
    s_waitcnt lgkmcnt(0)
    s_mov_b32 s20, s4
    s_and_b32 s21, s5, 0xffff
    s_add_u32 s24, s8, s15
    s_addc_u32 s25, s9, 0
    s_and_b32 s25, s25, 0xffff""")

    TB = 66
    if prog:
        assert fused and bl == 4
        a("s_lshr_b32 s41, s13, 1\ns_lshl_b32 s41, s41, 16\ns_sub_u32 s41, s28, s41")
        for q in range(4):
            tab = [sum(blk(2 * s_ + c) << (6 * k + 6) for k, s_ in enumerate(range(4 + q, 28, 4))) for c in range(2)]
            a(f"""s_mov_b32 s{TB+2*q}, {tab[1] & 0xffffffff}
            s_cmp_lt_u32 s13, 2
            s_cselect_b32 s{TB+2*q}, {tab[0] & 0xffffffff}, s{TB+2*q}
            s_mov_b32 s{TB+2*q+1}, {tab[1] >> 32}
            s_cselect_b32 s{TB+2*q+1}, {tab[0] >> 32}, s{TB+2*q+1}""")
    if fused: a(f"s_mov_b32 s28, s52\ns_add_u32 s30, s30, {HALF0}")
    vm = VM()
    vm.issue("code")
    def dma_ops(s, cur):
        base = "s30" if (s // 4) % 2 == (cur // 4) % 2 else "s42"
        ops = []
        for i in range(4):
            pre = [f"s_add_u32 m0, {base}, {slot(s) * STAGE}"] if i == 0 else []
            ins = f"buffer_load_dwordx4 v{8+i}, s[20:23], s28 offen offset:{1024*i} lds"
            post = [f"s_add_u32 s28, s28, {64*2048}"] if i == 3 else []
            if prog:
                post = []
            ops.append((pre, ins, post, ("D", s)))
        return ops
    def act_ops(u):
        ops = []
        for j in range(2):
            ins = f"buffer_load_dwordx4 {aset(u, j)}, v{12+j}, s[24:27], s29 offen offset:{1024*(u&3)} {af}"
            post = ["s_add_u32 s29, s29, 4096"] if (j == 1 and (u & 3) == 3) else []
            ops.append(([], ins, post, ("A", u)))
        return ops
    seq = [(u, nt) for u in range(49) for nt in range(8)]
    seq += [(u, nt) for u in range(49, 56) for nt in range(4, 8)]
    keep0 = len(seq)
    seq += [(u, nt) for u in range(49, 56) for nt in range(4)]
    ordr = list(range(8))
    if chn:
        assert adist <= 6
        ordr = [4, 5, 6, 7, 0, 1, 2, 3]
        span = lambda sa, sb, nts: [(2 * s + k, nt) for s in range(sa, sb) for nt in nts for k in range(2)]
        seq = span(0, 24, ordr) + span(24, 28, ordr[:4])
        keep0 = len(seq)
        seq += span(24, 28, ordr[4:])
    def wread(n):
        if n >= len(seq): return []
        u, nt = seq[n]
        s, ks = divmod(u, 2)
        return [f"ds_read_b64_tr_b16 {wreg(n, x)}, v{16+nt} offset:{slot(s)*STAGE + (32*ks+16*x)*256}" for x in range(2)]

    extra = f"""v_lshrrev_b32 v2, 2, v0
    v_and_b32 v3, 3, v0
    v_lshlrev_b32 v3, 3, v3
    v_lshl_add_u32 v3, v2, 8, v3
    v_add_u32 v3, {HALF0 if fused else 0}, v3
    v_and_b32 v4, 7, v2
    s_lshl_b32 s16, s11, 2
    v_xor_b32 v4, s16, v4""".split("\n")
    for nt in range(8):
        extra += [f"v_xor_b32 v5, {nt}, v4", f"v_lshl_add_u32 v{16+nt}, v5, 5, v3"]
    extra += [f"v_mov_b64 v[{r}:{r+1}], 0" for r in range(ACC, ACC + 64, 2)]
    extra += f"""s_add_u32 s32, s8, {WS_H}
    s_addc_u32 s33, s9, 0
    s_and_b32 s33, s33, 0xffff
    s_mov_b32 s34, 4194304
    s_mov_b32 s35, 0x20000
    s_mov_b32 s36, s6
    s_and_b32 s37, s7, 0xffff
    s_mov_b32 s38, 4194304
    s_mov_b32 s39, 0x20000
    s_add_u32 s44, s8, {WS_XCH}
    s_addc_u32 s45, s9, 0
    s_and_b32 s45, s45, 0xffff
    s_mov_b32 s46, {256*16384}
    s_mov_b32 s47, 0x20000
    v_bfe_u32 v2, v0, 2, 1
    v_lshlrev_b32 v2, 21, v2
    v_and_b32 v3, 3, v0
    v_bfe_u32 v4, v0, 3, 1
    v_lshl_add_u32 v3, v4, 2, v3
    v_lshl_add_u32 v2, v3, 11, v2
    v_bfe_u32 v3, v0, 4, 1
    v_lshl_add_u32 v2, v3, 5, v2
    v_bfe_u32 v3, v0, 5, 1
    v_lshl_add_u32 v14, v3, 4, v2
    v_add_u32 v15, 16384, v14
    s_lshl_b32 s40, s14, 15
    s_lshl_b32 s15, s10, 8
    s_add_u32 s40, s40, s15
    s_lshl_b32 s15, s11, 7
    s_add_u32 s40, s40, s15
    s_lshl_b32 s48, s2, 2
    s_add_u32 s48, s48, s13
    s_lshl_b32 s48, s48, 12
    s_xor_b32 s49, s48, {4 << 14}
    s_mov_b32 s50, -2
    v_bfe_u32 v3, v0, 3, 1
    v_mul_u32_u24 v3, {4*2048 - 64}, v3
    v_sub_u32 v28, v14, v3
    v_sub_u32 v29, v15, v3
    s_add_u32 s51, s40, {4*2048}
    s_mov_b32 s31, 0""".split("\n")
    a("s_xor_b32 s42, s30, 0x10000")
    if fused:
        for e in extra: a(e)
        a(f"""s_and_b32 s54, s2, 7
        s_lshl_b32 s54, s54, 5
        s_lshr_b32 s55, s2, 3
        s_add_u32 s54, s54, s55
        s_xor_b32 s55, s54, 128
        s_mul_i32 s54, s54, {BETA_STRIDE}
        v_bfe_u32 v2, v0, 2, 2
        v_lshlrev_b32 v2, 5, v2
        v_and_or_b32 v2, v0, 3, v2
        s_lshl_b32 s16, s11, 7
        s_lshr_b32 s17, s12, 1
        s_lshl_b32 s17, s17, 2
        s_add_u32 s16, s16, s17
        v_add_u32 v2, s16, v2
        s_lshl_b32 s16, s12, 4
        v_and_b32 v3, 15, v0
        v_add_u32 v3, s16, v3
        v_cmp_gt_u32 vcc, 16, v0
        v_cndmask_b32 v2, v3, v2, vcc
        v_mov_b32 v3, s55
        v_cmp_gt_u32 vcc, 32, v0
        v_cndmask_b32 v2, v3, v2, vcc
        v_mul_u32_u24 v2, {BETA_STRIDE}, v2
        v_mov_b32 v1, 1
        v_mov_b32 v30, 0
        s_mov_b32 s64, 0""")
        if prog:
            a(f"""v_add_u32 v25, 16, v2
            v_mov_b32_dpp v24, v2 quad_perm:[0,1,2,3] row_mask:0xf bank_mask:0xf
            v_mov_b32 v3, v2
            s_nop 1
            v_permlane16_swap_b32 v24, v3
            v_bfe_u32 v3, v0, 4, 1
            s_and_b32 s16, s12, 1
            s_lshl_b32 s16, s16, 1
            v_add_u32 v3, s16, v3
            v_lshl_add_u32 v24, v3, 2, v24
            v_readlane_b32 s16, v24, 0
            v_cmp_gt_u32 vcc, 32, v0
            v_mov_b32 v3, s16
            v_cndmask_b32 v2, v3, v24, vcc
            v_add_u32 v2, 16, v2
            s_cmp_eq_u32 s13, 0
            s_cselect_b32 s16, 1, 0
            v_cmp_gt_u32 vcc, s16, v0
            v_mov_b32 v31, 0x7fff0000
            v_cndmask_b32 v30, v31, v30, vcc""")
            diag_mark(a, diag and fm[0], fm[0])
        else:
            a(f"s_waitcnt vmcnt({young})\ns_barrier")
            diag_mark(a, diag and fm[0], fm[0])
            a(f"""s_cmp_lg_u32 s13, 0
            s_cbranch_scc1 L_g2_nf
            s_mov_b64 exec, 1
            buffer_store_dword v1, v30, s[60:63], s54 offen offset:16 sc1
            s_mov_b64 exec, -1
            L_g2_nf:""")
        if pre:
            a(f"s_waitcnt vmcnt({1 if prog else 0})\ns_barrier")
            for n in range(WD):
                for r in wread(n): a(r)
        a(f"""s_cmp_lg_u32 s13, 0
        s_cbranch_scc1 L_g2_go
        s_sleep {sl0}
        L_g2_wait:
        s_sleep {sl1}
        buffer_load_dword v3, v2, s[60:63], 0 offen offset:16 sc1
        s_add_u32 s64, s64, 1
        s_waitcnt vmcnt(0)
        v_cmp_ne_u32 vcc, 1, v3
        s_cmp_lt_u32 s64, 0x40000
        s_cselect_b64 s[74:75], vcc, 0
        s_cmp_lg_u64 s[74:75], 0
        s_cbranch_scc1 L_g2_wait
        L_g2_go:
        s_waitcnt vmcnt(0)
        s_barrier""")
        for s_ in range(3): vm.issue(("D", s_))
        order = []
        for u in range(adist): order += act_ops(u)
        for s_ in range(3, bl): order += dma_ops(s_, 0)
        for pre_, ins, post, tag in order:
            for p in pre_: a(p)
            a(ins); vm.issue(tag)
            for p in post: a(p)
        for x in held:
            a(x); vm.issue("held")
    else:
        order = []
        for s in range(bl):
            order += dma_ops(s, 0)
            for u in range(2 * s, min(2 * s + 2, adist)): order += act_ops(u)
        for u in range(2 * bl, adist): order += act_ops(u)
        for n, (pre, ins, post, tag) in enumerate(order):
            for p in pre: a(p)
            a(ins); vm.issue(tag)
            for p in post: a(p)
            if n >= 7:
                k = 0
                while extra and (k < 6 or extra[0].strip().startswith("s_addc")):
                    a(extra.pop(0)); k += 1
        for e in extra: a(e)
        a(f"s_waitcnt vmcnt({vm.need([('D', 0)])})")
        a("s_barrier")
    for gf in range(0 if fused and pre else WD):
        for r in wread(gf): a(r)

    sched, spread = {}, {}
    def put(n, op): sched.setdefault(n, []).append(op)
    def nextoff(s):
        t = TB + 2 * (s % 4)
        return [f"s_lshr_b64 s[{t}:{t+1}], s[{t}:{t+1}], 6", f"s_and_b32 s28, s{t}, 63", f"s_lshl_b32 s28, s28, 16", "s_add_u32 s28, s28, s41"]
    if prog:
        for x in nextoff(4): a(x)
        for s in range(24):
            for pos, x in zip((3, 13, 13, 14), nextoff(s + 5)): spread.setdefault(16 * s + pos, []).append(x)
    for s in range(24):
        for i, op in enumerate(dma_ops(s + bl, 4 * (s // 4))): put(16 * s + 4 * i, op)
        for k in range(4): put(16 * s + 4 * k + 2, act_ops(2 * s + adist + k // 2)[k % 2])
    if prog:
        for s in range(3, 24, 4): put(16 * s + 11, (["s_cmp_eq_u32 s31, 0", f"s_cselect_b32 s62, {256*BETA_STRIDE}, 0"], "buffer_store_dword v1, v30, s[60:63], s54 offen offset:16 sc1", [], "flag"))
        for s in range(0, 24, 4): put(16 * s + 1, (["s_cmp_eq_u32 s31, 3", f"s_cselect_b32 s62, {256*BETA_STRIDE}, 0"], "buffer_load_dword v26, v25, s[60:63], 0 offen sc1", [], ("F", s)))
    rest = []
    for s in range(24 + bl, 28): rest += dma_ops(s, 24)
    for u in range(48 + adist, 56): rest += act_ops(u)
    rest.sort(key=lambda op: op[3][1] * (2 if op[3][0] == "D" else 1))
    for j in range(2):
        for p in range(2):
            rest.append(([], f"buffer_load_dwordx4 v[{HR+4*(2*j+p)}:{HR+4*(2*j+p)+3}], v{14+j}, s[32:35], s40 offen offset:{64*p} {af}", [], "h"))
    for k, op in enumerate(rest): put(384 + k, op)
    send = []
    for p in range(2):
        for j in range(2):
            x, y = ACC + 4 * ((4 + 2 * p) * 2 + j), ACC + 4 * ((5 + 2 * p) * 2 + j)
            send += [f"v_cvt_pk_bf16_f32 v{x}, v{x}, v{x+1}", f"v_cvt_pk_bf16_f32 v{x+1}, v{x+2}, v{x+3}",
                     f"v_cvt_pk_bf16_f32 v{x+2}, v{y}, v{y+1}", f"v_cvt_pk_bf16_f32 v{x+3}, v{y+2}, v{y+3}"]
            if tail2:
                send += [f"v_min_u32 v{x+r}, s50, v{x+r}" for r in (0, 2, 1, 3)]
                send += ["s_nop 0", f"v_permlane16_swap_b32 v{x}, v{x+2}", f"v_permlane16_swap_b32 v{x+1}, v{x+3}"]
            else: send += [f"v_min_u32 v{x+r}, s50, v{x+r}" for r in range(4)]
            send += [f"buffer_store_dwordx4 v[{x}:{x+3}], v12, s[44:47], s48 offen offset:{1024*(2*p+j)} sc1"]
    xloads = [f"buffer_load_dwordx4 v[{RX+4*k}:{RX+4*k+3}], v12, s[44:47], s49 offen offset:{1024*k} sc1" for k in range(4)]
    if xat:
        for k, x in enumerate(xloads): put(len(seq) - xat + k, ([], x, [], "x"))
    seen_a, seen_d = set(), {0}
    def job(n, out):
        u, nt = seq[n]
        s, f = divmod(n, 16)
        head, fill = [], [[], []]
        if chn:
            if n % 2 == 0 and u not in seen_a:
                seen_a.add(u); head.append(("vm", vm.need([("A", u + 1)])))
        elif u not in seen_a:
            seen_a.add(u); head.append(("vm", vm.need([("A", u)])))
        if n % 2 == 0:
            head.append(("t", f"s_waitcnt lgkmcnt({2*max(0, min(WD-2, len(seq)-2-n))})"))
        if n + WD < len(seq) and seq[n + WD][0] // 2 not in seen_d:
            sd = seq[n + WD][0] // 2
            seen_d.add(sd)
            head.append(("vm", vm.need([("D", sd)])))
            head.append(("t", "s_barrier"))
        if chn:
            if n < 384 and s % 4 == 3 and f % 2 == 0 and f <= 10: fill[1].append(f"v_xor_b32 v{16+ordr[(f // 2 + 2) % 8]}, 0x10000, v{16+ordr[(f // 2 + 2) % 8]}")
            if n < 384 and s % 4 == 3 and f in (1, 3): fill[1].append(f"v_xor_b32 v{16+ordr[f // 2]}, 0x10000, v{16+ordr[f // 2]}")
        else:
            if n < 384 and s % 4 == 3 and f >= 16 - WD:
                k = f - (16 - WD)
                head.append(("t", f"v_xor_b32 v{16+k}, 0x10000, v{16+k}"))
            if n <= 385 and s % 4 == 0 and f < 8 - WD:
                head.append(("t", f"v_xor_b32 v{16+WD+f}, s43, v{16+WD+f}"))
        rd = wread(n + WD)
        if rd: fill[0].append(rd[0]); fill[1].append(rd[1])
        if prog and n < 384:
            if n % 64 == 53:
                head.append(("vm", vm.need([("F", s - 3)]))); fill[0].append("v_cmp_ne_u32 vcc, 1, v26")
            if n % 64 == 55: fill[0] += ["s_cmp_eq_u32 s31, 3", "s_cselect_b64 s[74:75], vcc, 0"]
            if n % 64 == 57: fill[0] += ["s_cmp_lg_u64 s[74:75], 0", "s_cbranch_scc1 L_g2_late", "L_g2_back:"]
            for q_, x in enumerate(spread.get(n, [])): fill[q_ % 2].append(x)
        for pre, ins, post, tag in sched.get(n, []):
            fill[0] = pre + fill[0]
            fill[1].append(ins); vm.issue(tag)
            fill[1].extend(post)
        if n >= keep0 + 2:
            for k in range(srate):
                if send:
                    x = send.pop(0); fill[0 if k < srate // 2 else 1].append(x)
        if bl > 4 and n < 384 and s % 4 == (27 - bl) % 4 and f == 13:
            fill[1] += ["s_cmp_eq_u32 s31, 5", "s_cselect_b32 s22, 0, s22"]
        if n < 384 and s % 4 == 3 and f == 13:
            fill[0].append("s_xor_b32 s30, s30, 0x10000")
            fill[0].append("s_xor_b32 s42, s42, 0x10000")
            fill[1].append("s_mov_b32 s43, 0x10000")
        if n < 384 and s % 4 == 3 and f == 15:
            fill[0].append("s_add_u32 s31, s31, 1")
            fill[1].append("s_cmp_lt_u32 s31, 6")
        out.extend(head)
        for j in range(2):
            jj, m_ = (j ^ (n & 1) if zig else j), n
            if chn:
                k = 2 * (n % 2) + j
                m_, jj = n - n % 2 + (0, 1, 1, 0)[k], (k // 2) ^ ((n // 2) & 1)
            out.append(("t", f"v_mfma_f32_16x16x32_bf16 {acc(nt, jj)}, {wreg(m_)}, {aset(seq[m_][0], jj)}, {acc(nt, jj)}"))
            for x in fill[j]: out.append(("t", x))
    iters = []
    for it in range(6):
        out = []
        for n in range(64 * it, 64 * it + 64): job(n, out)
        iters.append(out)
    a("s_mov_b32 s43, 0")
    if fused or not marks:
        diag_mark(a, diag and (fm[1] or not fused), fm[1] if fused else 1)
        if diag: a("s_waitcnt lgkmcnt(0)")
        if diag and cnt == "flag": a(f"s_mov_b32 s{DS+4*fm[1]+2}, s64\ns_mov_b32 s{DS+4*fm[1]+3}, 0")
    fold_loop(a, "L_g2_loop", iters)
    if lm: diag_mark(a, diag, 2)
    out = []
    for n in range(384, len(seq)): job(n, out)
    for k, x in out: a(f"s_waitcnt vmcnt({x})" if k == "vm" else x)
    assert not send
    if not fused and not lm: diag_mark(a, diag, 1 if marks else 2)

    a("s_mov_b32 s17, 0")
    if xat: a("s_branch L_g2_check")
    a("L_g2_poll:")
    for x in xloads: a(x)
    if tail2:
        a("s_cmp_lg_u32 s17, 0\ns_cbranch_scc1 L_g2_check\ns_waitcnt vmcnt(8)\ns_nop 4")
        for j in range(2):
            for p in range(2):
                x, y = ACC + 4 * (4 * p + j), ACC + 4 * (4 * p + 2 + j)
                hreg = HR + 4 * (2 * j + p)
                for r in range(4): a(f"v_permlane16_swap_b32 v{x+r}, v{y+r}")
                for d in range(4):
                    dst = x + 2 * d if d < 2 else y + 2 * (d - 2)
                    t = 2 + 2 * (d & 1)
                    a(f"v_lshlrev_b32 v{t}, 16, v{hreg+d}\nv_and_b32 v{t+1}, 0xffff0000, v{hreg+d}")
                    a(f"v_pk_add_f32 v[{dst}:{dst+1}], v[{dst}:{dst+1}], v[{t}:{t+1}]")
    a("L_g2_check:")
    a("s_add_u32 s17, s17, 1")
    for k in range(4):
        a(f"s_waitcnt vmcnt({3-k})")
        b = RX + 4 * k
        if k == 0:
            a(f"v_max3_u32 v2, v{b}, v{b+1}, v{b+2}\nv_max_u32 v2, v2, v{b+3}")
        else:
            a(f"v_max3_u32 v2, v2, v{b}, v{b+1}\nv_max3_u32 v2, v2, v{b+2}, v{b+3}")
    a("""v_cmp_eq_u32 vcc, -1, v2
    s_cmp_lt_u32 s17, 0x40000
    s_cselect_b64 s[18:19], vcc, 0
    s_cmp_lg_u64 s[18:19], 0
    s_cbranch_scc1 L_g2_poll""")
    if marks: diag_mark(a, diag, 2)
    if diag and cnt == "x": a(f"s_mov_b32 s{DS+4*fm[1]+2}, s17\ns_mov_b32 s{DS+4*fm[1]+3}, 0")
    for j in range(2):
        for p in range(2):
            x, y = ACC + 4 * (4 * p + j), ACC + 4 * (4 * p + 2 + j)
            hreg, rx = HR + 4 * (2 * j + p), RX + 4 * (2 * p + j)
            for d in range(4):
                dst = x + 2 * d if d < 2 else y + 2 * (d - 2)
                t = 2 + 2 * (d & 1)
                a(f"v_lshlrev_b32 v{t}, 16, v{rx+d}")
                a(f"v_and_b32 v{t+1}, 0xffff0000, v{rx+d}")
                a(f"v_pk_add_f32 v[{dst}:{dst+1}], v[{dst}:{dst+1}], v[{t}:{t+1}]")
                if tail2: a(f"v_cvt_pk_bf16_f32 v{hreg+d}, v{dst}, v{dst+1}")
            for r in range(0 if tail2 else 4):
                a(f"v_permlane16_swap_b32 v{x+r}, v{y+r}")
            for d in range(0 if tail2 else 4):
                src = x + 2 * d if d < 2 else y + 2 * (d - 2)
                a(f"v_lshlrev_b32 v2, 16, v{hreg+d}")
                a(f"v_and_b32 v3, 0xffff0000, v{hreg+d}")
                a(f"v_pk_add_f32 v[2:3], v[2:3], v[{src}:{src+1}]")
                a(f"v_cvt_pk_bf16_f32 v{hreg+d}, v2, v3")
            if not full: a(f"buffer_store_dwordx4 v[{hreg}:{hreg+3}], v{14+j}, s[36:39], s40 offen offset:{64*p} {store_flags}")
        if full:
            h0, h1 = HR + 8 * j, HR + 8 * j + 4
            for d in range(4): a(f"v_mov_b32_dpp v{RX+d}, v{h1+d} row_ror:8 row_mask:0xf bank_mask:0xf")
            for d in range(4): a(f"v_mov_b32_dpp v{h1+d}, v{h0+d} row_ror:8 row_mask:0xf bank_mask:0x3")
            for d in range(4): a(f"v_mov_b32_dpp v{h0+d}, v{RX+d} quad_perm:[0,1,2,3] row_mask:0xf bank_mask:0xc")
            a(f"buffer_store_dwordx4 v[{h0}:{h0+3}], v{28+j}, s[36:39], s40 offen {of}")
            a(f"buffer_store_dwordx4 v[{h1}:{h1+3}], v{28+j}, s[36:39], s51 offen {of}")
    diag_end(a, diag, 4, 8, 9)
    if prog:
        a(f"""s_endpgm
        L_g2_late:
        s_mov_b32 s62, {256*BETA_STRIDE}
        s_sleep 2
        buffer_load_dword v26, v25, s[60:63], 0 offen sc1
        s_add_u32 s64, s64, 1
        s_waitcnt vmcnt(0)
        v_cmp_ne_u32 vcc, 1, v26
        s_cmp_lt_u32 s64, 0x80000
        s_cselect_b64 s[74:75], vcc, 0
        s_cmp_lg_u64 s[74:75], 0
        s_cbranch_scc1 L_g2_late
        s_branch L_g2_back""")
    if fused: return
    a("L_g2_end:")
    a("s_endpgm")
    return a.text(), kernel_desc(NAME, 240, 176), f"kernel={NAME} grid=(256,1,1) block=(256,1,1) lds={LDS}"
```

```python
from asmlib import *

NAME = "gemm2_kernel"
STAGE = 16384
LDS = 8 * STAGE
WD = 3
ACC, WR, RX, HR, SX = 64, 32, 192, 208, 224

HALF0 = 0x18000

def ids(a, nblk, kh, mblk):
    a(f"""s_bfe_u32 s{mblk}, s2, 0x10001
    s_lshl_b32 s{mblk}, s{mblk}, 3
    s_bfe_u32 s{kh}, s2, 0x30003
    s_add_u32 s{mblk}, s{mblk}, s{kh}
    s_and_b32 s{nblk}, s2, 1
    s_lshl_b32 s{nblk}, s{nblk}, 2
    s_lshr_b32 s{kh}, s2, 6
    s_add_u32 s{nblk}, s{nblk}, s{kh}
    s_bfe_u32 s{kh}, s2, 0x10002""")

VOFF = """v_lshrrev_b32 v2, 4, v0
    v_lshlrev_b32 v3, 1, v2
    v_and_b32 v8, 15, v0
    v_xor_b32 v3, v3, v8
    v_lshlrev_b32 v2, 11, v2
    v_lshl_add_u32 v8, v3, 4, v2
    v_xor_b32 v9, 128, v8
    v_add_u32 v9, 7168, v9
    v_add_u32 v10, 14336, v8
    v_add_u32 v11, 14336, v9"""

def early():
    from fftlib import lines
    setup = [l.strip() for l in VOFF.split("\n")] + lines(lambda t: ids(t, 54, 55, 56))
    setup += f"""s_mul_i32 s52, s55, {1792*2048}
    s_lshl_b32 s54, s54, 8
    s_add_u32 s52, s52, s54
    s_lshl_b32 s54, s13, 15
    s_add_u32 s52, s52, s54
    s_lshl_b32 s53, s13, 12""".split("\n")
    ops = []
    for s in range(3):
        for i in range(4):
            pre = [f"s_add_u32 m0, s53, {HALF0 + ((s + 1) % 4) * STAGE}"] if i == 0 else []
            post = [f"s_add_u32 s52, s52, {64*2048}"] if i == 3 else []
            ops.append((pre, f"buffer_load_dwordx4 v{8+i}, s[32:35], s52 offen offset:{1024*i} lds", post, "g2"))
    return setup, ops

def gen(diag=False, store_flags="", adist=3, bl=4, marks=0, wide=False, a=None, af='', sl0=16, sl1=2, fm=(0, 2), young=0, gt=(3, 5, 10), zig=False, wd=3, lm=False):
    def acc(nt, j):
        b = areg(nt, j); return f"v[{b}:{b+3}]"
    def areg(nt, j): return ACC + 4 * (nt * 4 + j)
    def aset(s, j):
        b = (s % 4) * 16 + 4 * j; return f"a[{b}:{b+3}]"
    def wreg(gf, x=None):
        b = WR + 4 * (gf % 8)
        return f"v[{b}:{b+3}]" if x is None else f"v[{b+2*x}:{b+2*x+1}]"
    fused = a is not None
    WD = wd
    slot = (lambda s: (s + 1) % 4) if fused else (lambda s: s % 4)
    if not fused:
        a = Asm()
        kernel_head(a, NAME)
        diag_begin(a, diag)
        a("""s_cmp_ge_u32 s2, 256
        s_cbranch_scc1 L_g2_end
        s_load_dwordx4 s[4:7], s[0:1], 48
        s_load_dwordx2 s[8:9], s[0:1], 72""")
        code_prefetch(a, NAME, "L_g2_end", 30)
        a("""v_lshrrev_b32 v1, 6, v0
        v_and_b32 v0, 63, v0
        s_nop 0
        v_readfirstlane_b32 s13, v1""")
    else:
        a("s_mov_b64 s[4:5], s[72:73]\ns_mov_b64 s[6:7], s[94:95]")
    ids(a, 10, 11, 12)
    if wide:
        a("""s_and_b32 s12, s2, 3
        s_lshl_b32 s12, s12, 2
        s_bfe_u32 s10, s2, 0x20003
        s_add_u32 s12, s12, s10
        s_lshr_b32 s10, s2, 5""")
    if not fused: a(VOFF)
    a("v_lshlrev_b32 v12, 4, v0")
    a(f"""s_and_b32 s15, s13, 1
    s_mul_i32 s16, s15, {2*112*1024}
    v_add_u32 v24, s16, v12
    v_add_u32 v25, {112*1024}, v24
    s_sub_u32 s16, {2*112*1024}, s16
    v_add_u32 v26, s16, v12
    v_add_u32 v27, {112*1024}, v26
    s_mul_i32 s29, s11, 56
    s_add_u32 s29, s29, s15
    s_lshl_b32 s29, s29, 10
    s_lshl_b32 s17, s15, 13
    s_lshl_b32 s14, s12, 2
    s_add_u32 s14, s14, s13
    s_lshr_b32 s15, s14, 1
    s_mul_i32 s15, s15, {4*112*1024}
    s_add_u32 s15, s15, {WS_HH}
    s_mul_i32 s28, s11, {1792*2048}
    s_lshl_b32 s16, s10, 8
    s_add_u32 s28, s28, s16
    s_lshl_b32 s16, s13, 15
    s_add_u32 s28, s28, s16
    s_lshl_b32 s30, s13, 12
    s_mov_b32 s22, 7340032
    s_mov_b32 s23, 0x20000
    s_mov_b32 s26, {4*112*1024}
    s_mov_b32 s27, 0x20000
    s_waitcnt lgkmcnt(0)
    s_mov_b32 s20, s4
    s_and_b32 s21, s5, 0xffff
    s_add_u32 s24, s8, s15
    s_addc_u32 s25, s9, 0
    s_and_b32 s25, s25, 0xffff""")

    if fused: a(f"s_mov_b32 s28, s52\ns_add_u32 s30, s30, {HALF0}")
    vm = VM()
    vm.issue("code")
    def dma_ops(s, cur):
        base = "s30" if (s // 4) % 2 == (cur // 4) % 2 else "s42"
        ops = []
        for i in range(4):
            pre = [f"s_add_u32 m0, {base}, {slot(s) * STAGE}"] if i == 0 else []
            ins = f"buffer_load_dwordx4 v{8+i}, s[20:23], s28 offen offset:{1024*i} lds"
            post = [f"s_add_u32 s28, s28, {64*2048}"] if i == 3 else []
            ops.append((pre, ins, post, ("D", s)))
        return ops
    def act_ops(s):
        ops = []
        for j in range(4):
            ins = f"buffer_load_dwordx4 {aset(s, j)}, v{24+j}, s[24:27], s29 offen offset:{2048*(s&1)} {af}"
            post = ["s_add_u32 s29, s29, 4096"] if (j == 3 and s & 1) else []
            ops.append(([], ins, post, ("A", s)))
        return ops
    seq = [(s, nt) for s in range(25) for nt in range(8)]
    seq += [(s, nt) for s in range(25, 28) for nt in range(4, 8)]
    keep0 = len(seq)
    seq += [(s, nt) for s in range(25, 28) for nt in range(4)]
    def wread(n):
        if n >= len(seq): return []
        s, nt = seq[n]
        return [f"ds_read_b64_tr_b16 {wreg(n, x)}, v{16+nt} offset:{slot(s)*STAGE + 16*x*256}" for x in range(2)]
    XB = 0 if fused else 0x10000

    extra = f"""v_lshrrev_b32 v2, 2, v0
    v_and_b32 v3, 3, v0
    v_lshlrev_b32 v3, 3, v3
    v_lshl_add_u32 v3, v2, 8, v3
    v_add_u32 v3, {HALF0 if fused else 0}, v3
    v_add_u32 v3, s17, v3
    s_lshl_b32 s51, s13, 13
    s_add_u32 s51, s51, {XB}
    v_add_u32 v28, s51, v12
    v_xor_b32 v13, 8192, v28
    v_and_b32 v4, 7, v2
    s_lshl_b32 s16, s11, 2
    v_xor_b32 v4, s16, v4""".split("\n")
    for nt in range(8):
        extra += [f"v_xor_b32 v5, {nt}, v4", f"v_lshl_add_u32 v{16+nt}, v5, 5, v3"]
    extra += [f"v_mov_b64 v[{r}:{r+1}], 0" for r in range(ACC, ACC + 128, 2)]
    extra += f"""s_add_u32 s32, s8, {WS_H}
    s_addc_u32 s33, s9, 0
    s_and_b32 s33, s33, 0xffff
    s_mov_b32 s34, 4194304
    s_mov_b32 s35, 0x20000
    s_mov_b32 s36, s6
    s_and_b32 s37, s7, 0xffff
    s_mov_b32 s38, 4194304
    s_mov_b32 s39, 0x20000
    s_add_u32 s44, s8, {WS_XCH}
    s_addc_u32 s45, s9, 0
    s_and_b32 s45, s45, 0xffff
    s_mov_b32 s46, {256*16384}
    s_mov_b32 s47, 0x20000
    v_bfe_u32 v2, v0, 2, 1
    v_lshlrev_b32 v2, 21, v2
    v_and_b32 v3, 3, v0
    v_bfe_u32 v4, v0, 3, 1
    v_lshl_add_u32 v3, v4, 2, v3
    v_lshl_add_u32 v2, v3, 11, v2
    v_bfe_u32 v3, v0, 4, 1
    v_lshl_add_u32 v2, v3, 5, v2
    v_bfe_u32 v3, v0, 5, 1
    v_lshl_add_u32 v14, v3, 4, v2
    v_add_u32 v15, 16384, v14
    s_lshl_b32 s40, s14, 15
    s_lshl_b32 s15, s10, 8
    s_add_u32 s40, s40, s15
    s_lshl_b32 s15, s11, 7
    s_add_u32 s40, s40, s15
    s_lshl_b32 s48, s2, 2
    s_add_u32 s48, s48, s13
    s_lshl_b32 s48, s48, 12
    s_xor_b32 s49, s48, {4 << 14}
    s_mov_b32 s50, -2
    s_mov_b32 s31, 0""".split("\n")
    a("s_xor_b32 s42, s30, 0x10000")
    if fused:
        for e in extra: a(e)
        a(f"""s_and_b32 s54, s2, 7
        s_lshl_b32 s54, s54, 5
        s_lshr_b32 s55, s2, 3
        s_add_u32 s54, s54, s55
        s_xor_b32 s55, s54, 128
        s_mul_i32 s54, s54, {BETA_STRIDE}
        v_bfe_u32 v2, v0, 2, 2
        v_lshlrev_b32 v2, 5, v2
        v_and_or_b32 v2, v0, 3, v2
        s_lshl_b32 s56, s11, 7
        s_lshr_b32 s57, s12, 1
        s_lshl_b32 s57, s57, 2
        s_add_u32 s56, s56, s57
        v_add_u32 v2, s56, v2
        s_lshl_b32 s56, s12, 4
        v_and_b32 v3, 15, v0
        v_add_u32 v3, s56, v3
        v_cmp_gt_u32 vcc, 16, v0
        v_cndmask_b32 v2, v3, v2, vcc
        v_mov_b32 v3, s55
        v_cmp_gt_u32 vcc, 32, v0
        v_cndmask_b32 v2, v3, v2, vcc
        v_mul_u32_u24 v2, {BETA_STRIDE}, v2
        v_mov_b32 v1, 1
        v_mov_b32 v30, 0
        s_mov_b32 s64, 0
        s_waitcnt vmcnt({young})
        s_barrier""")
        diag_mark(a, diag and fm[0], fm[0])
        a(f"""s_cmp_lg_u32 s13, 0
        s_cbranch_scc1 L_g2_go
        s_mov_b64 exec, 1
        buffer_store_dword v1, v30, s[60:63], s54 offen offset:16 sc1
        s_mov_b64 exec, -1
        s_sleep {sl0}
        L_g2_wait:
        s_sleep {sl1}
        buffer_load_dword v3, v2, s[60:63], 0 offen offset:16 sc1
        s_add_u32 s64, s64, 1
        s_waitcnt vmcnt(0)
        v_cmp_ne_u32 vcc, 1, v3
        s_cmp_lt_u32 s64, 0x40000
        s_cselect_b64 s[74:75], vcc, 0
        s_cmp_lg_u64 s[74:75], 0
        s_cbranch_scc1 L_g2_wait
        L_g2_go:
        s_waitcnt vmcnt(0)
        s_barrier""")
        for s_ in range(3): vm.issue(("D", s_))
        order = []
        for u in range(adist): order += act_ops(u)
        for s_ in range(3, bl): order += dma_ops(s_, 0)
        for pre, ins, post, tag in order:
            for p in pre: a(p)
            a(ins); vm.issue(tag)
            for p in post: a(p)
    else:
        order = []
        for s in range(bl):
            order += dma_ops(s, 0)
            if s < adist: order += act_ops(s)
        for n, (pre, ins, post, tag) in enumerate(order):
            for p in pre: a(p)
            a(ins); vm.issue(tag)
            for p in post: a(p)
            if n >= 7:
                k = 0
                while extra and (k < 8 or extra[0].strip().startswith("s_addc")):
                    a(extra.pop(0)); k += 1
        for e in extra: a(e)
        a(f"s_waitcnt vmcnt({vm.need([('D', 0)])})")
        a("s_barrier")
    for gf in range(WD):
        for r in wread(gf): a(r)

    sched = {}
    def put(n, op): sched.setdefault(n, []).append(op)
    for s in range(24):
        for i, op in enumerate(dma_ops(s + bl, 4 * (s // 4))): put(8 * s + 2 * i, op)
        for k, op in enumerate(act_ops(s + adist)): put(8 * s + 2 * k + 1, op)
    rest = []
    for s in range(24 + min(bl, adist), 28):
        if s >= 24 + bl: rest += dma_ops(s, 24)
        if s >= 24 + adist: rest += act_ops(s)
    for j in range(2):
        for p in range(2):
            rest.append(([], f"buffer_load_dwordx4 v[{HR+4*(2*j+p)}:{HR+4*(2*j+p)+3}], v{14+j}, s[32:35], s40 offen offset:{64*p} {af}", [], "h"))
    for k, op in enumerate(rest): put(192 + k, op)

    def give(nt0, off):
        return [f"ds_write_b128 v28, {acc(nt0 + k // 2, 2 + k % 2)} offset:{off + 1024*k}" for k in range(8)]
    def take(off):
        return [f"ds_read_b128 v[{SX+4*k}:{SX+4*k+3}], v13 offset:{off + 1024*k}" for k in range(8)]
    send = []
    for p in range(2):
        for j in range(2):
            x, y = areg(4 + 2 * p, j), areg(5 + 2 * p, j)
            for t, b in ((2 * p, x), (2 * p + 1, y)):
                send += [f"v_add_f32 v{b+r}, v{b+r}, v{SX+4*(2*t+j)+r}" for r in range(4)]
            send += [f"v_cvt_pk_bf16_f32 v{x}, v{x}, v{x+1}", f"v_cvt_pk_bf16_f32 v{x+1}, v{x+2}, v{x+3}",
                     f"v_cvt_pk_bf16_f32 v{x+2}, v{y}, v{y+1}", f"v_cvt_pk_bf16_f32 v{x+3}, v{y+2}, v{y+3}"]
            send += [f"v_min_u32 v{x+r}, s50, v{x+r}" for r in range(4)]
            send += [f"buffer_store_dwordx4 v[{x}:{x+3}], v12, s[44:47], s48 offen offset:{1024*(2*p+j)} sc1"]
    lg = VM()
    for n in range(WD): lg.issue(("W", n)); lg.issue(("W", n))
    GB, GT = keep0 + gt[0], keep0 + gt[1]
    tail_ds = {keep0 - (1 if zig else 2) + k: give(4, 0)[2*k:2*k+2] for k in range(4)}
    tail_ds.update({GB: take(0)[:4], GB + 1: take(0)[4:]})
    seen_a, seen_d = set(), {0}
    def job(n, out):
        st, nt = seq[n]
        s, f = divmod(n, 8)
        head, fill = [], [[], [], [], []]
        if st not in seen_a:
            seen_a.add(st); head.append(("vm", vm.need([("A", st)])))
        need = lg.need([("W", min(n + 1, len(seq) - 1) if zig and n % 2 == 0 else n)])
        if n == GB: need = min(need, lg.need(["give"]))
        if n == GT: need = min(need, lg.need(["take"]))
        head.append(("t", f"s_waitcnt lgkmcnt({need})"))
        if n == GB: head.append(("t", "s_barrier"))
        if n + WD < len(seq) and seq[n + WD][0] not in seen_d:
            sd = seq[n + WD][0]
            seen_d.add(sd)
            head.append(("vm", vm.need([("D", sd)])))
            head.append(("t", "s_barrier"))
        rd = wread(n + WD)
        if rd:
            fill[0].append(rd[0]); fill[1].append(rd[1])
            lg.issue(("W", n + WD)); lg.issue(("W", n + WD))
        for pre, ins, post, tag in sched.get(n, []):
            fill[1].extend(pre)
            fill[2].append(ins); vm.issue(tag)
            fill[2].extend(post)
        for k, x in enumerate(tail_ds.get(n, [])):
            fill[2 + k // 2].append(x); lg.issue("give" if "write" in x else "take")
        if n >= GT:
            for pos in sorted(([2, 3, 0, 1] * 4)[:gt[2]]):
                if send: fill[pos].append(send.pop(0))
        if n < 192 and s % 4 == 3:
            k = (f + WD) % 8 if f < 8 - WD else None
            if k is not None: fill[3].append(f"v_xor_b32 v{16+k}, 0x10000, v{16+k}")
            if f < WD: fill[3].append(f"v_xor_b32 v{16+f}, 0x10000, v{16+f}")
            if f == 6:
                fill[3].append("s_xor_b32 s30, s30, 0x10000")
                fill[3].append("s_xor_b32 s42, s42, 0x10000")
            if f == 7:
                fill[3].append("s_add_u32 s31, s31, 1")
                fill[3].append("s_cmp_lt_u32 s31, 6")
        out.extend(head)
        for j in range(4):
            m_, jj = n, j
            if zig:
                k = 4 * (n % 2) + j
                m_, jj = n - n % 2 + (0, 1, 1, 0)[k % 4], k // 2
                if (n // 2) % 2: jj = 3 - jj
            out.append(("t", f"v_mfma_f32_16x16x32_bf16 {acc(seq[m_][1], jj)}, {wreg(m_)}, {aset(st, jj)}, {acc(seq[m_][1], jj)}"))
            for x in fill[j]: out.append(("t", x))
    iters = []
    for it in range(6):
        out = []
        for n in range(32 * it, 32 * it + 32): job(n, out)
        iters.append(out)
    if fused or not marks:
        diag_mark(a, diag and (fm[1] or not fused), fm[1] if fused else 1)
        if diag: a("s_waitcnt lgkmcnt(0)")
    fold_loop(a, "L_g2_loop", iters)
    if lm: diag_mark(a, diag, 2)
    out = []
    for n in range(192, len(seq)): job(n, out)
    for k, x in out: a(f"s_waitcnt vmcnt({x})" if k == "vm" else x)
    for x in send: a(x)
    if not fused and not lm: diag_mark(a, diag, 1 if marks else 2)
    for x in give(0, 32768): a(x)
    a("s_waitcnt lgkmcnt(0)\ns_barrier")
    for x in take(32768): a(x)

    a("s_mov_b32 s17, 0\nL_g2_poll:")
    for k in range(4):
        a(f"buffer_load_dwordx4 v[{RX+4*k}:{RX+4*k+3}], v12, s[44:47], s49 offen offset:{1024*k} sc1")
    a("s_add_u32 s17, s17, 1")
    for k in range(4):
        a(f"s_waitcnt vmcnt({3-k})")
        b = RX + 4 * k
        if k == 0:
            a(f"v_max3_u32 v2, v{b}, v{b+1}, v{b+2}\nv_max_u32 v2, v2, v{b+3}")
        else:
            a(f"v_max3_u32 v2, v2, v{b}, v{b+1}\nv_max3_u32 v2, v2, v{b+2}, v{b+3}")
    a("""v_cmp_eq_u32 vcc, -1, v2
    s_cmp_lt_u32 s17, 0x40000
    s_cselect_b64 s[18:19], vcc, 0
    s_cmp_lg_u64 s[18:19], 0
    s_cbranch_scc1 L_g2_poll""")
    if marks: diag_mark(a, diag, 2)
    a("s_waitcnt lgkmcnt(0)")
    for j in range(2):
        for p in range(2):
            x, y = areg(2 * p, j), areg(2 * p + 1, j)
            for t, b in ((2 * p, x), (2 * p + 1, y)):
                for r in (0, 2):
                    sx = SX + 4 * (2 * t + j) + r
                    a(f"v_pk_add_f32 v[{b+r}:{b+r+1}], v[{b+r}:{b+r+1}], v[{sx}:{sx+1}]")
            hreg, rx = HR + 4 * (2 * j + p), RX + 4 * (2 * p + j)
            for d in range(4):
                dst = x + 2 * d if d < 2 else y + 2 * (d - 2)
                t = 2 + 2 * (d & 1)
                a(f"v_lshlrev_b32 v{t}, 16, v{rx+d}")
                a(f"v_and_b32 v{t+1}, 0xffff0000, v{rx+d}")
                a(f"v_pk_add_f32 v[{dst}:{dst+1}], v[{dst}:{dst+1}], v[{t}:{t+1}]")
            for r in range(4):
                a(f"v_permlane16_swap_b32 v{x+r}, v{y+r}")
            for d in range(4):
                src = x + 2 * d if d < 2 else y + 2 * (d - 2)
                a(f"v_lshlrev_b32 v2, 16, v{hreg+d}")
                a(f"v_and_b32 v3, 0xffff0000, v{hreg+d}")
                a(f"v_pk_add_f32 v[2:3], v[2:3], v[{src}:{src+1}]")
                a(f"v_cvt_pk_bf16_f32 v{hreg+d}, v2, v3")
            a(f"buffer_store_dwordx4 v[{hreg}:{hreg+3}], v{14+j}, s[36:39], s40 offen offset:{64*p} {store_flags}")
    diag_end(a, diag, 4, 8, 9)
    if fused: return
    a("L_g2_end:")
    a("s_endpgm")
    return a.text(), kernel_desc(NAME, 320, 256), f"kernel={NAME} grid=(256,1,1) block=(256,1,1) lds={LDS}"
```

```python
import sys
import hazard
from asmlib import ablate
HEADER = open("sequential_preLN__spectral_gfnet__glu_gated_bilinear__prompt.s.ref").read().split("; Override launch")[0]
DOC = """;
;
;
"""
def assemble(parts, launches=None, verbose=False):
    s = HEADER
    for l in (launches or [p[2] for p in parts]): s += f"; @launch {l}\n"
    s += '.amdgcn_target "amdgcn-amd-amdhsa--gfx950"\n' + DOC + '.text\n'
    for p in parts:
        rep = []
        t = hazard.fix(p[0], rep)
        if len(rep) > 40: print('many pads', p[2], len(rep))
        if verbose: print(p[2].split()[0], "pads:", sum(r[0] for r in rep), "in", len(rep), "places")
        for l in t.split("\n"):
            if l.endswith("_loop:"): hazard.check_loop(t, l[:-1])
        s += t
    s += '.section .rodata,"a"\n'
    for p in parts: s += ".p2align 6\n" + p[1]
    return s
def full(diag, f1={}, f2={}, f3={}, g1={}, g2={}):
    import fft1, fft2, fft3, gemm1, gemm2
    return assemble([fft1.gen(diag, **f1), fft2.gen(diag, **f2), fft3.gen(diag, **f3), gemm1.gen(diag, **g1), gemm2.gen(diag, **g2)])
def fused23(diag, f1={}, f2={}, f3={}, g1={}, g2={}, tag=True):
    import fft1, fft2, fft3, gemm1, gemm2
    return assemble([fft1.gen(diag, tag=tag, **f1), fft2.gen(diag, chain=lambda a: fft3.gen(diag, a=a, tag=tag, **f3), tag=tag, **f2), gemm1.gen(diag, **g1), gemm2.gen(diag, **g2)])
def fusedB(diag, f1={}, f2={}, f3={}, g1={}, g2={}):
    import fft1, fft2, fft3, gemm1, gemm2
    lb = 2 * gemm1.STAGE
    main = fft2.gen(diag, tag=True, lb=lb, name="main_kernel", top=gemm1.early_top, fin=(512, lb + fft2.LDS),
                    chain=lambda a: fft3.gen(diag, a=a, tag=True, lb=lb, early=gemm1.early_dma, chain=lambda a: gemm1.gen(diag, a=a, **g1), **f3), **f2)
    return assemble([fft1.gen(diag, tag=True, **f1), main, gemm2.gen(diag, **g2)])
def fusedC(diag, f1={}, f2={}, f3={}, g1={}, g2={}, ksplit=False):
    import fft1, fft2, fft3, gemm1, gemm2, gemm2k
    if ksplit: gemm2, g2 = gemm2k, {k: v for k, v in g2.items() if k not in ("adist",)}
    lb = 2 * gemm1.STAGE
    c2 = lambda a, young, held=(): gemm2.gen(diag, a=a, young=young, **(dict(g2, held=held) if held else g2))
    c1 = lambda a: gemm1.gen(diag, a=a, chain=c2, nxt=gemm2.early(g2.get('prog', False)), **g1)
    main = fft2.gen(diag, tag=True, lb=lb, name="main_kernel", top=gemm1.early_top, fin=(512, 163840),
                    chain=lambda a: fft3.gen(diag, a=a, tag=True, lb=lb, early=gemm1.early_dma, chain=c1, **f3), **f2)
    return assemble([fft1.gen(diag, tag=True, **f1), main])
if __name__ == "__main__":
    W = lambda n, t: open(f"exp/{n}.s", "w").write(t)
    P = dict(f2=dict(pf=(0, 2)))
    G = dict(g1=dict(l2rows=4), g2=dict(adist=6, bl=4))
    GB = lambda **k: dict(f2=dict(pf=(0, 2)), g1=dict(l2rows=4, af="sc1", **k), g2=dict(adist=6, bl=4))
    F3 = dict(where="mfma")
    K = dict(sl0=16, sl1=2, wgflag=True)
    GC = lambda fm1=(0, 1), l2=4, l2late=True, x1={}, x2={}, f3=F3, **k: dict(f2=dict(dict(pf=(0, 2)), **x2), f3=f3, g1=dict(l2rows=l2, l2late=l2late, **dict(dict(af="sc1"), **x1), gorder=(3, 0, 1, 2), sf_left="sc1", fm=fm1, **{k_: v_ for k_, v_ in K.items() if k_ not in x1}), g2=dict(dict(adist=6, bl=4, af="sc1"), **k))
    M = dict(fm1=(0, 0), fm=(1, 2))
    X = dict(l2=0, x1=dict(wdspread=True))
    Y = dict(l2=0, x1=dict(wdspread=True, pre=True, hearly=True), pre=True, full=True, sl0=4)
    B = dict(bspread=True)
    Z = dict(l2=0, x1=dict(wdspread=True, hearly=True, young=14), pre=True, full=True, x2=B)
    Y1 = dict(l2=0, x1=dict(wdspread=True, pre=True, hearly=True, nearly=1), pre=True, full=True)
    def best(d, f1={}, x2={}, f3={}, x1={}, fm1=(0, 1), **k):
        y = dict(Y); y["x1"] = dict(Y["x1"], **x1); y.update(k)
        return fusedC(d, f1=dict(dict(nextpf="mid", hold=True, rot=True, wn=2), **f1), **GC(fm1=fm1, x2=dict(dict(bspread=True, selfpf=False, rot=True, lean=True, pfat=2, wlate=True), **x2), f3=dict(dict(F3, xpost=True, uat=1, dspread=(8, 3)), **f3), **y))
    W("best", best(False))
    M2 = dict(fm1=(0, 0), fm=(1, 2))
    PG = dict(prog=True, quick=8)
    ZG = dict(x1=dict(PG, zig=True), prog=True, zig=True)
    def top(d=False, x1={}, **k): return best(d, x1=dict(dict(PG, zig=True, chn=True), **x1), prog=True, zig=True, tail2=True, **k)
    W("top", top())
    q = lambda f1={}, **k: top(True, f1=f1, x2=dict(pm=True, **k), f3=dict(pm=2), fm1=(0, 0), fm=(0, 0))
    W("v0_diag", top(True))
```
